```python
import torch

def _softmax(x, axis=-1):
    return torch.softmax(x, dim=axis)
def _gelu(x):
    return torch.nn.functional.gelu(x, approximate="tanh")
def _silu(x):
    return torch.nn.functional.silu(x)
def _sigmoid(x):
    return torch.sigmoid(x)
def _layernorm(x, axis=-1, eps=1e-5):
    m = x.mean(dim=axis, keepdim=True)
    v = x.var(dim=axis, keepdim=True, unbiased=False)
    return (x - m) / torch.sqrt(v + eps)
def _scatter_add(tgt, idx, src, axis=0):
    return tgt.clone().index_add_(axis, idx, src)
def _segment_sum(src, seg, n):
    out = torch.zeros((n,) + src.shape[1:], dtype=src.dtype)
    return out.index_add_(0, seg, src)
def _pad(x, pw):
    flat = tuple(v for pair in reversed(pw) for v in pair)
    return torch.nn.functional.pad(x, flat)

kernel_name = 'standalone__geglu_ffn__prompt'

def setup_inputs():

    _w = (lambda a: (lambda t: t.to(torch.bfloat16) if t.is_floating_point() else t)(torch.as_tensor(a)))
    B, S, D, F = 1, 2048, 512, 1792
    return {
        "x": _w((lambda *s: torch.randn(*s, dtype=torch.bfloat16) * 0.05)(B, S, D)),
        "w_gate": _w((lambda *s: torch.randn(*s, dtype=torch.bfloat16) * 0.05)(D, F)),
        "w_up": _w((lambda *s: torch.randn(*s, dtype=torch.bfloat16) * 0.05)(D, F)),
        "w_down": _w((lambda *s: torch.randn(*s, dtype=torch.bfloat16) * 0.05)(F, D)),
    }

def reference(x, w_gate, w_up, w_down):
    return (_gelu(x @ w_gate) * (x @ w_up)) @ w_down
```

```python
class Asm:
    def __init__(self):
        self.lines = []
        self._lab = 0
    def __call__(self, s):
        for ln in s.strip("\n").split("\n"):
            self.lines.append("    " + ln.strip() if not ln.strip().endswith(":") else ln.strip())
    def raw(self, s):
        self.lines.append(s)
    def label(self, name):
        self.lines.append(name + ":")
    def newlabel(self, base="L"):
        self._lab += 1
        return f"{base}_{self._lab}"
    def text(self):
        return "\n".join(self.lines) + "\n"

HEADER = """; Kernarg layout for this problem (56 bytes, ptrs only, base s[0:1]):
"""

def kernel_begin(name):
    return f""".text
.globl {name}
.p2align 8
.type {name},@function
{name}:
"""

def kernel_desc(name, vgpr, sgpr=102, accum=None, extra=""):
    if accum is None:
        accum = (vgpr + 3) // 4 * 4
    accum = min(accum, 256)
    return f""".section .rodata,"a"
.p2align 6
.amdhsa_kernel {name}
  .amdhsa_next_free_vgpr {vgpr}
  .amdhsa_next_free_sgpr {sgpr}
  .amdhsa_accum_offset {accum}
  .amdhsa_group_segment_fixed_size 0
  .amdhsa_kernarg_size 56
  .amdhsa_user_sgpr_count 2
  .amdhsa_user_sgpr_kernarg_segment_ptr 1
  .amdhsa_system_sgpr_workgroup_id_x 1
{extra}.end_amdhsa_kernel
"""

def srd(a, d, b, nbytes):
    a(f"""s_mov_b32 s{d}, s{b}
s_and_b32 s{d+1}, s{b+1}, 0xffff
s_mov_b32 s{d+2}, {nbytes}
s_mov_b32 s{d+3}, 0x00020000""")
```

```python
import sys, struct
from asmlib import *
import math
def f2h(f): return "0x%08x" % struct.unpack("<I", struct.pack("<f", f))[0]
C1 = -2.0 * math.log2(math.e) * math.sqrt(2.0 / math.pi)
C2 = C1 * 0.044715

def epilogue(a, acc, tmp, dst, sc1, sc2):
    for j in range(8): a(f"v_mul_f32 v{tmp+j}, v{acc+j}, v{acc+j}")
    for j in range(8): a(f"v_fma_f32 v{tmp+j}, v{tmp+j}, s{sc2}, v{sc1}")
    for j in range(8): a(f"v_mul_f32 v{tmp+j}, v{tmp+j}, v{acc+j}")
    for j in range(8): a(f"v_exp_f32 v{tmp+j}, v{tmp+j}")
    for j in range(8): a(f"v_mul_f32 v{acc+j}, v{acc+j}, v{acc+8+j}")
    for j in range(8): a(f"v_add_f32 v{tmp+j}, 1.0, v{tmp+j}")
    for j in range(8): a(f"v_rcp_f32 v{tmp+j}, v{tmp+j}")
    a("s_nop 0")
    for j in range(8): a(f"v_mul_f32 v{tmp+j}, v{tmp+j}, v{acc+j}")
    for j in range(4): a(f"v_cvt_pk_bf16_f32 v{dst+j}, v{tmp+2*j}, v{tmp+2*j+1}")

def k1():
    a = Asm()
    name = "k1_kernel"
    a.raw(kernel_begin(name))
    a("""
s_cmp_ge_u32 s2, 448
s_cbranch_scc1 K1_end
s_load_dwordx4 s[4:7], s[0:1], 0
s_load_dwordx2 s[8:9], s[0:1], 16
s_load_dwordx2 s[10:11], s[0:1], 48
v_lshrrev_b32 v1, 6, v0
v_and_b32 v2, 63, v0
s_nop 0
v_readfirstlane_b32 s3, v1
s_and_b32 s30, s2, 15
s_lshr_b32 s31, s2, 4
s_waitcnt lgkmcnt(0)
""")
    srd(a, 12, 4, 2048*512*2); srd(a, 16, 6, 512*1792*2); srd(a, 20, 8, 512*1792*2); srd(a, 24, 10, 2048*1792*2)
    a("""
v_lshrrev_b32 v3, 3, v2
v_and_b32 v4, 7, v2
v_lshrrev_b32 v5, 1, v3
v_xor_b32 v4, v4, v5
v_lshlrev_b32 v4, 4, v4
s_lshl_b32 s33, s3, 5
v_add_u32 v6, s33, v3
v_lshl_add_u32 v10, v6, 10, v4
v_add_u32 v11, 7*1024, v10
v_xor_b32 v11, 64, v11
v_add_u32 v12, 14*1024, v10
v_add_u32 v13, 21*1024, v10
v_xor_b32 v13, 64, v13
s_lshl_b32 s33, s3, 4
v_add_u32 v6, s33, v3
s_movk_i32 s34, 3584
v_mul_lo_u32 v6, v6, s34
v_bfe_u32 v4, v2, 1, 2
v_bfe_u32 v5, v2, 4, 1
v_xor_b32 v4, v4, v5
v_lshlrev_b32 v4, 5, v4
v_and_b32 v5, 1, v2
v_lshl_add_u32 v4, v5, 4, v4
v_add_u32 v14, v6, v4
v_add_u32 v15, 8*3584-1024, v14
v_xor_b32 v4, 64, v4
v_add_u32 v16, v6, v4
v_add_u32 v17, 8*3584-1024, v16
v_bfe_u32 v3, v2, 4, 1
v_lshrrev_b32 v4, 5, v2
v_lshlrev_b32 v4, 3, v4
v_bfe_u32 v5, v2, 2, 2
v_add_u32 v4, v4, v5
v_lshlrev_b32 v4, 7, v4
v_lshl_add_u32 v4, v3, 13, v4
v_bfe_u32 v5, v2, 3, 2
v_xor_b32 v5, s3, v5
v_lshl_add_u32 v4, v5, 5, v4
v_and_b32 v5, 1, v2
v_lshl_add_u32 v4, v5, 4, v4
v_bfe_u32 v5, v2, 1, 1
v_lshl_add_u32 v18, v5, 3, v4
v_and_b32 v3, 31, v2
v_lshlrev_b32 v3, 7, v3
v_add_u32 v3, 16384, v3
v_lshrrev_b32 v4, 5, v2
v_bfe_u32 v5, v2, 1, 3
v_xor_b32 v4, v4, v5
v_lshl_add_u32 v20, v4, 4, v3
v_xor_b32 v21, 32, v20
v_xor_b32 v22, 64, v20
v_xor_b32 v23, 96, v20
""")
    for i in range(64): a(f"v_mov_b32 v{64+i}, 0")
    a("""
s_lshl_b32 s35, s30, 17
s_lshl_b32 s36, s31, 7
s_lshl_b32 s37, s3, 11
s_lshl_b32 s38, s3, 12
s_add_u32 s38, s38, 16384
s_mov_b32 s39, 0
K1_loop:
s_mov_b32 m0, s37
s_nop 0
buffer_load_dwordx4 v14, s[16:19], s36 offen lds
buffer_load_dwordx4 v15, s[16:19], s36 offen offset:1024 lds
s_add_u32 m0, s37, 8192
s_nop 0
buffer_load_dwordx4 v16, s[20:23], s36 offen lds
buffer_load_dwordx4 v17, s[20:23], s36 offen offset:1024 lds
s_mov_b32 m0, s38
s_nop 0
buffer_load_dwordx4 v10, s[12:15], s35 offen lds
buffer_load_dwordx4 v11, s[12:15], s35 offen offset:1024 lds
buffer_load_dwordx4 v12, s[12:15], s35 offen offset:2048 lds
buffer_load_dwordx4 v13, s[12:15], s35 offen offset:3072 lds
s_waitcnt vmcnt(0)
s_barrier
""")
    for ks in range(4):
        a(f"ds_read_b64_tr_b16 v[24:25], v18 offset:{2048*ks}")
        a(f"ds_read_b64_tr_b16 v[26:27], v18 offset:{2048*ks+512}")
        for b in range(4):
            a(f"ds_read_b128 v[{28+4*b}:{31+4*b}], v{20+ks} offset:{4096*b}")
        a("s_waitcnt lgkmcnt(0)")
        for b in range(4):
            a(f"v_mfma_f32_32x32x16_bf16 v[{64+16*b}:{79+16*b}], v[24:27], v[{28+4*b}:{31+4*b}], v[{64+16*b}:{79+16*b}]")
    a(f"""
s_barrier
s_add_u32 s35, s35, 128
s_add_u32 s36, s36, 64*3584
s_add_u32 s39, s39, 1
s_cmp_lt_u32 s39, 8
s_cbranch_scc1 K1_loop
s_nop 15
s_mov_b32 s40, {f2h(C2)}
v_mov_b32 v44, {f2h(C1)}
v_lshlrev_b32 v45, 4, v2
s_mul_i32 s41, s30, 448
s_lshl_b32 s42, s31, 2
s_add_u32 s41, s41, s42
s_add_u32 s41, s41, s3
s_lshl_b32 s41, s41, 10
""")
    for b in range(4):
        epilogue(a, 64+16*b, 48, 56+0, 44, 40)
        a(f"buffer_store_dwordx4 v[56:59], v45, s[24:27], s41 offen")
        a("s_add_u32 s41, s41, 112*1024\ns_nop 1")
    a("""
s_waitcnt vmcnt(0)
K1_end:
s_endpgm
""")
    return a.text(), kernel_desc(name, 128)

def k2():
    a = Asm()
    name = "k2_kernel"
    a.raw(kernel_begin(name))
    a("""
s_cmp_ge_u32 s2, 256
s_cbranch_scc1 K2_end
s_load_dwordx4 s[4:7], s[0:1], 24
s_load_dwordx2 s[10:11], s[0:1], 48
v_lshrrev_b32 v1, 6, v0
v_and_b32 v2, 63, v0
s_nop 0
v_readfirstlane_b32 s3, v1
s_and_b32 s30, s2, 7
s_lshr_b32 s31, s2, 3
s_waitcnt lgkmcnt(0)
""")
    srd(a, 12, 4, 1792*512*2); srd(a, 16, 6, 2048*512*2); srd(a, 24, 10, 2048*1792*2)
    a("""
v_lshrrev_b32 v3, 3, v2
v_and_b32 v4, 7, v2
v_bfe_u32 v5, v2, 4, 1
v_lshlrev_b32 v5, 2, v5
v_xor_b32 v4, v4, v5
v_lshlrev_b32 v4, 4, v4
v_lshl_add_u32 v10, v3, 10, v4
v_lshrrev_b32 v4, 5, v2
v_lshlrev_b32 v4, 3, v4
v_bfe_u32 v5, v2, 2, 2
v_add_u32 v4, v4, v5
v_lshlrev_b32 v4, 7, v4
v_bfe_u32 v5, v2, 3, 1
v_lshl_add_u32 v4, v5, 6, v4
v_bfe_u32 v5, v2, 4, 1
v_lshl_add_u32 v4, v5, 5, v4
v_and_b32 v5, 3, v2
v_lshl_add_u32 v4, v5, 3, v4
s_mul_i32 s33, s3, 20480
v_add_u32 v11, s33, v4
v_xor_b32 v12, 64, v11
v_lshlrev_b32 v13, 4, v2
s_mul_i32 s34, s3, 224*1024
s_lshl_b32 s35, s30, 7
s_add_u32 s34, s34, s35
""")
    for rnd, (s0, ns) in enumerate(((0, 10), (10, 4))):
        a("s_mov_b32 s36, s33")
        for i in range(2*ns):
            a(f"s_mov_b32 m0, s36\ns_add_u32 s36, s36, 1024\nbuffer_load_dwordx4 v10, s[12:15], s34 offen lds\ns_add_u32 s34, s34, 8192")
        a("s_waitcnt vmcnt(0)")
        for st in range(ns):
            r = 128 + 8*(s0+st)
            a(f"ds_read_b64_tr_b16 v[{r}:{r+1}], v11 offset:{2048*st}")
            a(f"ds_read_b64_tr_b16 v[{r+2}:{r+3}], v11 offset:{2048*st+512}")
            a(f"ds_read_b64_tr_b16 v[{r+4}:{r+5}], v12 offset:{2048*st}")
            a(f"ds_read_b64_tr_b16 v[{r+6}:{r+7}], v12 offset:{2048*st+512}")
            a("s_waitcnt lgkmcnt(0)")
    a("s_barrier")
    a("""
v_bfe_u32 v3, v2, 3, 1
v_lshlrev_b32 v3, 4, v3
v_lshrrev_b32 v4, 5, v2
s_lshl_b32 s37, s3, 1
v_add_u32 v4, s37, v4
v_add_u32 v3, v3, v4
v_lshlrev_b32 v3, 11, v3
v_bfe_u32 v5, v2, 4, 1
v_lshl_add_u32 v3, v5, 7, v3
v_and_b32 v6, 7, v2
v_lshl_add_u32 v14, v6, 4, v3
v_lshrrev_b32 v6, 2, v4
v_lshlrev_b32 v6, 3, v6
v_lshl_add_u32 v6, v5, 2, v6
v_and_b32 v7, 3, v4
v_add_u32 v6, v6, v7
v_lshlrev_b32 v6, 10, v6
v_and_b32 v7, 15, v2
v_lshl_add_u32 v15, v7, 3, v6
s_lshl_b32 s38, s3, 8
""")
    for t in range(2):
        a(f"""
s_lshl_b32 s39, s31, 1
s_add_u32 s39, s39, {t}
s_mul_i32 s40, s39, 112
s_mul_i32 s41, s3, 14
s_add_u32 s40, s40, s41
s_lshl_b32 s40, s40, 10
""")
        for st in range(14):
            a(f"buffer_load_dwordx4 v[{64+4*st}:{67+4*st}], v13, s[24:27], s40 offen offset:{1024*(st%4)}")
            if st % 4 == 3: a("s_add_u32 s40, s40, 4096")
        a("s_waitcnt vmcnt(0)")
        for st in range(14):
            r = 128 + 8*st
            for nb2 in range(2):
                c = "0" if st == 0 else f"v[{32+16*nb2}:{47+16*nb2}]"
                a(f"v_mfma_f32_32x32x16_bf16 v[{32+16*nb2}:{47+16*nb2}], v[{64+4*st}:{67+4*st}], v[{r+4*nb2}:{r+4*nb2+3}], {c}")
        a("s_mov_b32 m0, s38\ns_nop 15")
        for i in range(32):
            a(f"ds_write_addtid_b32 v{32+i} offset:{2048*i}")
        a("s_waitcnt lgkmcnt(0)\ns_barrier")
        for p in range(8):
            a(f"ds_read_b128 v[{64+4*p}:{67+4*p}], v14 offset:{256*p}")
        a("s_waitcnt lgkmcnt(0)\ns_barrier")
        for p in range(1, 8):
            for j in range(4):
                a(f"v_add_f32 v{64+j}, v{64+j}, v{64+4*p+j}")
        a(f"""
v_cvt_pk_bf16_f32 v16, v64, v65
v_cvt_pk_bf16_f32 v17, v66, v67
s_lshl_b32 s42, s39, 15
s_lshl_b32 s43, s30, 7
s_add_u32 s42, s42, s43
buffer_store_dwordx2 v[16:17], v15, s[16:19], s42 offen
""")
    a("""
s_waitcnt vmcnt(0)
K2_end:
s_endpgm
""")
    return a.text(), kernel_desc(name, 256)

def gen(probe=None):
    t1, d1 = k1(); t2, d2 = k2()
    hdr = HEADER
    body = ""; desc = ""
    if probe:
        hdr += probe[0]; body += probe[1]; desc += probe[2]
    hdr += "; @launch kernel=k1_kernel grid=(448,1,1) block=(256,1,1) lds=32768\n"
    hdr += "; @launch kernel=k2_kernel grid=(256,1,1) block=(512,1,1) lds=163840\n"
    return hdr + '.amdgcn_target "amdgcn-amd-amdhsa--gfx950"\n' + body + t1 + t2 + desc + d1 + d2
if __name__ == "__main__":
    open("v0.s", "w").write(gen())
```

```python
import sys
from asmlib import *
def gen(depth=3, nwg=224, mapping="4x7", xdirect=0, reps=1, nt=0):
    a = Asm()
    name = "standalone__geglu_ffn__prompt_kernel"
    a.raw(HEADER + f"; @launch grid=(256,1,1) block=(256,1,1) lds=163840\n.amdgcn_target \"amdgcn-amd-amdhsa--gfx950\"\n" + kernel_begin(name))
    a(f"""
s_memrealtime s[40:41]
s_memtime s[42:43]
s_load_dwordx4 s[4:7], s[0:1], 0
s_load_dwordx2 s[8:9], s[0:1], 16
s_load_dwordx2 s[10:11], s[0:1], 48
s_cmp_ge_u32 s2, 256
s_cbranch_scc1 L_end
v_lshrrev_b32 v1, 6, v0
v_and_b32 v2, 63, v0
s_nop 0
v_readfirstlane_b32 s3, v1
s_waitcnt lgkmcnt(0)
""")
    srd(a, 12, 4, 2048*512*2)
    srd(a, 16, 6, 512*1792*2)
    srd(a, 20, 8, 512*1792*2)
    srd(a, 24, 10, 256<<20)
    a("""
s_and_b32 s28, s2, 7
s_lshr_b32 s29, s2, 3
s_cmp_ge_u32 s29, 28
s_cbranch_scc1 L_stamp_only
""")
    if mapping == "4x7":
        a("""
s_lshr_b32 s30, s28, 1
s_lshl_b32 s30, s30, 2
s_and_b32 s31, s29, 3
s_add_u32 s30, s30, s31
s_and_b32 s31, s28, 1
s_mul_i32 s31, s31, 7
s_lshr_b32 s32, s29, 2
s_add_u32 s31, s31, s32
""")
    elif mapping == "2x14":
        a("""
s_lshl_b32 s30, s28, 1
s_and_b32 s31, s29, 1
s_add_u32 s30, s30, s31
s_lshr_b32 s31, s29, 1
""")
    a("""
v_lshrrev_b32 v3, 3, v2
v_and_b32 v4, 7, v2
v_lshrrev_b32 v5, 1, v3
v_xor_b32 v4, v4, v5
v_lshlrev_b32 v4, 4, v4
s_lshl_b32 s33, s3, 5
v_add_u32 v3, s33, v3
v_lshl_add_u32 v10, v3, 10, v4
v_add_u32 v11, 7*1024, v10
v_xor_b32 v11, 64, v11
v_add_u32 v12, 14*1024, v10
v_add_u32 v13, 21*1024, v10
v_xor_b32 v13, 64, v13
""")
    a("""
v_lshrrev_b32 v3, 4, v2
s_lshl_b32 s33, s3, 4
v_add_u32 v3, s33, v3
s_movk_i32 s34, 3584
v_mul_lo_u32 v3, v3, s34
v_and_b32 v4, 15, v2
v_lshl_add_u32 v14, v4, 4, v3
v_add_u32 v15, 4*3584-1024, v14
v_add_u32 v16, 8*3584-2048, v14
v_add_u32 v17, 12*3584-3072, v14
""")
    if xdirect:
        a("""
v_and_b32 v3, 31, v2
s_lshl_b32 s33, s3, 5
v_add_u32 v3, s33, v3
v_lshlrev_b32 v3, 10, v3
v_lshrrev_b32 v4, 5, v2
v_lshl_add_u32 v18, v4, 4, v3
""")
    ntf = " nt" if nt else ""
    a(f"""
s_mov_b32 s50, 0
L_rep:
s_lshl_b32 s35, s30, 17
s_lshl_b32 s36, s31, 8
s_mul_i32 s37, s3, 12288
s_mov_b32 s38, 0
s_mov_b32 s39, 0
L_loop:
s_add_u32 s44, s37, s39
s_mov_b32 m0, s44
s_nop 0
""")
    if xdirect:
        for j in range(4):
            a(f"buffer_load_dwordx4 v[{32+4*j}:{35+4*j}], v18, s[12:15], s35 offen offset:{32*j}")
    else:
        for j in range(4):
            a(f"buffer_load_dwordx4 v{10+j}, s[12:15], s35 offen offset:{1024*j} lds")
    a("s_add_u32 m0, s44, 4096\ns_nop 0")
    for j in range(4):
        a(f"buffer_load_dwordx4 v{14+j}, s[16:19], s36 offen offset:{1024*j} lds{ntf}")
    a("s_add_u32 m0, s44, 8192\ns_nop 0")
    for j in range(4):
        a(f"buffer_load_dwordx4 v{14+j}, s[20:23], s36 offen offset:{1024*j} lds{ntf}")
    a(f"""
s_add_u32 s35, s35, 128
s_add_u32 s36, s36, 64*3584
s_add_u32 s39, s39, 49152
s_cmp_ge_u32 s39, 3*49152
s_cselect_b32 s39, 0, s39
s_add_u32 s38, s38, 1
s_cmp_lg_u32 s38, {depth}
s_cbranch_scc1 L_nofirst
s_cmp_lg_u32 s50, 0
s_cbranch_scc1 L_nofirst
s_waitcnt vmcnt({12*(depth-1)})
s_memrealtime s[46:47]
s_memtime s[48:49]
s_waitcnt lgkmcnt(0)
L_nofirst:
s_waitcnt vmcnt({12*(depth-1)})
s_cmp_lt_u32 s38, 8
s_cbranch_scc1 L_loop
s_add_u32 s50, s50, 1
s_cmp_lt_u32 s50, {reps}
s_cbranch_scc1 L_rep
s_waitcnt vmcnt(0)
s_branch L_stamp
L_stamp_only:
s_mov_b64 s[46:47], 0
s_mov_b64 s[48:49], 0
L_stamp:
s_memrealtime s[52:53]
s_memtime s[54:55]
s_getreg_b32 s56, hwreg(HW_REG_XCC_ID)
s_getreg_b32 s57, hwreg(HW_REG_HW_ID)
s_waitcnt lgkmcnt(0)
v_mov_b32 v20, s40
v_mov_b32 v21, s46
v_mov_b32 v22, s52
v_mov_b32 v23, s56
v_mov_b32 v24, s42
v_mov_b32 v25, s48
v_mov_b32 v26, s54
v_mov_b32 v27, s57
s_lshl_b32 s58, s2, 7
s_lshl_b32 s59, s3, 5
s_add_u32 s58, s58, s59
s_add_u32 s58, s58, 128<<20
v_mov_b32 v28, 0
v_cmp_eq_u32 vcc, 0, v2
s_and_saveexec_b64 s[60:61], vcc
buffer_store_dwordx4 v[20:23], v28, s[24:27], s58 offen
buffer_store_dwordx4 v[24:27], v28, s[24:27], s58 offen offset:16
s_waitcnt vmcnt(0)
L_end:
s_endpgm
""")
    a.raw(kernel_desc(name, 64))
    return a.text()
if __name__ == "__main__":
    import itertools
    for depth in (1, 2, 3, 5):
        open(f"mb1_d{depth}.s", "w").write(gen(depth=depth))
    open("mb1_d3_2x14.s", "w").write(gen(depth=3, mapping="2x14"))
    open("mb1_d3_xd.s", "w").write(gen(depth=3, xdirect=1))
    open("mb1_d3_r4.s", "w").write(gen(depth=3, reps=4))
    open("mb1_d3_xd_r4.s", "w").write(gen(depth=3, reps=4, xdirect=1))
    open("mb1_d5_r4.s", "w").write(gen(depth=5, reps=4))
```

```python
import re, mb1, v0
from asmlib import *
def probe(depth=3):
    t = mb1.gen(depth=depth)
    body = t[t.index(".text"):t.index('.section .rodata')]
    desc = t[t.index('.section .rodata'):]
    body = body.replace("standalone__geglu_ffn__prompt_kernel", "probe_kernel")
    desc = desc.replace("standalone__geglu_ffn__prompt_kernel", "probe_kernel")
    body = body.replace("s_load_dwordx2 s[10:11], s[0:1], 48", "s_load_dwordx2 s[10:11], s[0:1], 40")
    body = body.replace(f"s_mov_b32 s26, {256<<20}", "s_mov_b32 s26, 64")
    i = body.index("    v_mov_b32 v20, s40")
    j = body.index("    s_waitcnt vmcnt(0)\nL_end:")
    body = body[:i] + """    s_sub_u32 s48, s48, s42
    s_sub_u32 s54, s54, s42
    v_mov_b32 v20, s48
    v_mov_b32 v21, s54
    s_lshl_b32 s58, s2, 3
    s_lshl_b32 s59, s3, 8
    s_add_u32 s58, s58, s59
    v_mov_b32 v28, 0
    v_cmp_eq_u32 vcc, 0, v2
    s_and_saveexec_b64 s[60:61], vcc
    buffer_store_dwordx2 v[20:21], v28, s[24:27], s58 offen
""" + body[j:]
    return ("; @launch kernel=probe_kernel grid=(256,1,1) block=(256,1,1) lds=163840\n", body, desc)
open("v0_probe.s", "w").write(v0.gen(probe=probe()))
p = probe()
open("v0_probe2.s", "w").write(v0.gen(probe=(p[0]+p[0], p[1], p[2])))
e = ("; @launch kernel=empty_kernel grid=(256,1,1) block=(256,1,1) lds=0\n", kernel_begin("empty_kernel") + "    s_endpgm\n", kernel_desc("empty_kernel", 8))
open("v0_empty.s", "w").write(v0.gen(probe=e))
```

```python
import sys, struct, math
from asmlib import *
def f2h(f): return "0x%08x" % struct.unpack("<I", struct.pack("<f", f))[0]
C1 = -2.0 * math.log2(math.e) * math.sqrt(2.0 / math.pi)
C2 = C1 * 0.044715
FLAG_OFF = 8 << 20
EPOCH_OFF = FLAG_OFF - 128
WS_REC = 9 << 20
STAMP_OFF = 128 << 20
NAME = "standalone__geglu_ffn__prompt_kernel"
PHYS = [0, 4, 2, 3, 1]
def slotbase(l): return PHYS[l] * 32768

sW = 3
SX, SG, SU, SD, SO, SWS, SDBG = 20, 24, 28, 32, 36, 40, 44
sXCD, sIDX, sMT, sCB, sROT, sXB, sWB, sM0W, sT0, sT1, sT2, sC2 = 48, 49, 50, 51, 52, 53, 54, 55, 56, 57, 58, 59
sTAG, sTAG2, sHST, sFST, sSPIN, sXP = 60, 61, 62, 63, 64, 65
sHQ = 66
sDQ = 73
sSTAMP = 80
vLANE, vG, vU, vXS, vXP, vDV, vWR, vXR, vD0, vD1, vL16, vC1, vTAGL, vTAG, vZERO, vST, vPOLL, vPFE, vPFL = 1, 2, 3, 4, 6, 10, 14, 15, 19, 20, 21, 22, 23, 24, 26, 27, 28, 30, 31
vXF, vTMP, vOUT, vACC, vWF = 32, 48, 56, 64, 128

STREGS = list(range(80, 102, 2)) + [4, 6, 8, 10, 12, 14]
class Gen(Asm):
    def __init__(self, stamps=False):
        super().__init__()
        self.vm = []; self.lg = []
        self.stamps = stamps; self.nst = 0; self.stnames = []
    def vmem(self, s, tag):
        self(s); self.vm.append(tag)
    def lds(self, s, tag):
        self(s); self.lg.append(tag)
    def _cnt(self, q, tag):
        idx = [i for i, t in enumerate(q) if t == tag]
        if not idx: return None
        return len(q) - 1 - idx[-1]
    def wait_vm(self, tag):
        n = self._cnt(self.vm, tag)
        if n is None: return
        assert n <= 63, n
        self(f"s_waitcnt vmcnt({n})"); self.vm = self.vm[len(self.vm) - n:] if n else []
    def wait_lg(self, tag):
        n = self._cnt(self.lg, tag)
        if n is None: return
        n = min(n, 15)
        self(f"s_waitcnt lgkmcnt({n})"); self.lg = self.lg[len(self.lg) - n:] if n else []
    def wait_all(self):
        self("s_waitcnt vmcnt(0) lgkmcnt(0)"); self.vm = []; self.lg = []
    def stamp(self, name):
        if not self.stamps: return
        r = STREGS[self.nst]
        self(f"s_memtime s[{r}:{r+1}]"); self.nst += 1; self.stnames.append(name)

def epi_instrs(acc):
    L = []
    t = vTMP
    for j in range(8): L.append(f"v_mul_f32 v{t+j}, v{acc+j}, v{acc+j}")
    for j in range(8): L.append(f"v_fma_f32 v{t+j}, v{t+j}, s{sC2}, v{vC1}")
    for j in range(8): L.append(f"v_mul_f32 v{t+j}, v{t+j}, v{acc+j}")
    for j in range(8):
        L.append(f"v_exp_f32 v{t+j}, v{t+j}")
        L.append(f"v_mul_f32 v{acc+j}, v{acc+j}, v{acc+8+j}")
    for j in range(8): L.append(f"v_add_f32 v{t+j}, 1.0, v{t+j}")
    for j in range(8): L.append(f"v_rcp_f32 v{t+j}, v{t+j}")
    for j in range(8): L.append(f"v_mul_f32 v{t+j}, v{t+j}, v{acc+j}")
    for j in range(4): L.append(f"v_cvt_pk_bf16_f32 v{vOUT+j}, v{t+2*j}, v{t+2*j+1}")
    return L

def gen(stamps=False, spin=200000):
    a = Gen(stamps)
    a.raw(HEADER + f"; @launch grid=(256,1,1) block=(512,1,1) lds=163840\n.amdgcn_target \"amdgcn-amd-amdhsa--gfx950\"\n" + kernel_begin(NAME))
    if stamps:
        a("s_memrealtime s[18:19]")
    a.stamp("start")
    a(f"""
s_load_dwordx8 s[4:11], s[0:1], 0
s_load_dwordx4 s[12:15], s[0:1], 32
s_load_dwordx2 s[16:17], s[0:1], 48
s_cmp_ge_u32 s2, 256
s_cbranch_scc1 L_end
s_getpc_b64 s[{sT0}:{sT0+1}]
v_lshrrev_b32 v60, 6, v0
s_and_b32 s{sT2}, s2, 0x78
v_add_u32 v61, s{sT2}, v60
v_lshlrev_b32 v61, 7, v61
global_load_dword v62, v61, s[{sT0}:{sT0+1}]
v_readfirstlane_b32 s{sW}, v60
v_and_b32 v{vLANE}, 63, v0
s_and_b32 s{sXCD}, s2, 7
s_lshr_b32 s{sIDX}, s2, 3
s_and_b32 s{sMT}, s{sXCD}, 1
s_lshl_b32 s{sMT}, s{sMT}, 2
s_and_b32 s{sT0}, s{sIDX}, 3
s_add_u32 s{sMT}, s{sMT}, s{sT0}
s_lshr_b32 s{sCB}, s{sXCD}, 1
s_mul_i32 s{sCB}, s{sCB}, 7
s_lshr_b32 s{sT1}, s{sIDX}, 2
s_add_u32 s{sCB}, s{sCB}, s{sT1}
s_lshl_b32 s{sROT}, s{sT0}, 1
s_add_u32 s{sROT}, s{sROT}, s{sT1}
s_lshl_b32 s{sXB}, s{sMT}, 18
s_lshl_b32 s{sWB}, s{sCB}, 7
s_lshl_b32 s{sM0W}, s{sW}, 12
v_lshrrev_b32 v32, 3, v{vLANE}
v_lshl_add_u32 v33, v60, 3, v32
v_mul_u32_u24 v33, 3584, v33
v_bfe_u32 v34, v{vLANE}, 1, 2
v_bfe_u32 v35, v{vLANE}, 4, 1
v_xor_b32 v34, v34, v35
v_lshlrev_b32 v34, 5, v34
v_and_b32 v35, 1, v{vLANE}
v_lshl_add_u32 v34, v35, 4, v34
v_add_u32 v{vG}, v33, v34
v_xor_b32 v34, 64, v34
v_add_u32 v{vU}, v33, v34
v_and_b32 v34, 7, v{vLANE}
v_lshrrev_b32 v35, 4, v{vLANE}
v_xor_b32 v34, v34, v35
v_lshlrev_b32 v34, 4, v34
v_lshl_add_u32 v36, v32, 10, v34
v_lshl_add_u32 v{vXS}, v60, 14, v36
v_add_u32 v{vXS+1}, 7*1024, v{vXS}
v_xor_b32 v{vXS+1}, 64, v{vXS+1}
s_waitcnt lgkmcnt(0)
s_sub_u32 s{SX}, s4, 2048
s_subb_u32 s{SX+1}, s5, 0
s_and_b32 s{SX+1}, s{SX+1}, 0xffff
s_mov_b32 s{SX+2}, {2048*512*2+2048}
s_mov_b32 s{SX+3}, 0x00020000
s_mov_b32 s{SG}, s6
s_and_b32 s{SG+1}, s7, 0xffff
s_mov_b32 s{SG+2}, {512*1792*2}
s_mov_b32 s{SG+3}, 0x00020000
s_sub_u32 s{SU}, s8, 1024
s_subb_u32 s{SU+1}, s9, 0
s_and_b32 s{SU+1}, s{SU+1}, 0xffff
s_mov_b32 s{SU+2}, {512*1792*2+1024}
s_mov_b32 s{SU+3}, 0x00020000
s_cmp_ge_u32 s{sIDX}, 28
s_cbranch_scc1 L_skip01
""")
    a.vm.append("pf")
    def dma_stage_setup(q):
        return [f"s_add_u32 s{sT0}, s{sROT}, {q}",
                f"s_and_b32 s{sT0}, s{sT0}, 7",
                f"s_mul_i32 s{sT1}, s{sT0}, {64*3584}",
                f"s_add_u32 s{sT1}, s{sT1}, s{sWB}",
                f"s_lshl_b32 s{sT0}, s{sT0}, 7",
                f"s_add_u32 s{sT0}, s{sT0}, s{sXB}",
                f"s_add_u32 m0, s{sM0W}, {slotbase(q % 5)}"]
    def dma_stage(q):
        return [f"buffer_load_dwordx4 v{vG}, s[{SG}:{SG+3}], s{sT1} offen lds",
                f"buffer_load_dwordx4 v{vU}, s[{SU}:{SU+3}], s{sT1} offen offset:1024 lds",
                f"buffer_load_dwordx4 v{vXS}, s[{SX}:{SX+3}], s{sT0} offen offset:2048 lds",
                f"buffer_load_dwordx4 v{vXS+1}, s[{SX}:{SX+3}], s{sT0} offen offset:3072 lds"]
    def dma_x_setup(q):
        half = (q - 8) & 1; bb = 4 + 2 * ((q - 8) >> 1)
        return [f"s_add_u32 s{sT0}, s{sROT}, s{sW}" if half == 0 else f"s_add_u32 s{sT0}, s{sROT}, s{sW}",
                f"s_and_b32 s{sT1}, s{sW}, 4",
                f"s_add_u32 s{sT0}, s{sT0}, s{sT1}",
                f"s_add_u32 s{sT0}, s{sT0}, {4*half}",
                f"s_and_b32 s{sT0}, s{sT0}, 7",
                f"s_lshl_b32 s{sT0}, s{sT0}, 7",
                f"s_add_u32 s{sT0}, s{sT0}, s{sXP}",
                f"s_add_u32 s{sT0}, s{sT0}, {bb*32768}",
                f"s_add_u32 m0, s{sM0W}, {slotbase(q % 5)}"]
    def dma_x(q):
        return [f"buffer_load_dwordx4 v{vXP+j}, s[{SX}:{SX+3}], s{sT0} offen offset:{1024*j} lds" for j in range(4)]
    DSLOT = [2, 3, 4, 0, 2, 3, 4]
    def dma_d_setup(q):
        return [f"s_add_u32 m0, s{sM0W}, {slotbase(DSLOT[q])}"]
    def dma_d(q):
        return [f"buffer_load_dwordx4 v{vDV+j}, s[{SD}:{SD+3}], s{sDQ+q} offen offset:{1024*j} lds" for j in range(4)]
    for q in (0, 1):
        for s in dma_stage_setup(q): a(s)
        a("s_nop 0")
        for s in dma_stage(q): a.vmem(s, f"p{q}")
    a.label("L_skip01")
    srd(a, SD, 10, 1792*512*2); srd(a, SO, 12, 2048*512*2); srd(a, SWS, 16, WS_REC if not stamps else 256 << 20); srd(a, SDBG, 14, 256)
    a(f"""
v_add_u32 v{vXP}, 2048, v36
v_add_u32 v{vXP+1}, 7*1024, v{vXP}
v_xor_b32 v{vXP+1}, 64, v{vXP+1}
v_add_u32 v{vXP+2}, 14*1024, v{vXP}
v_add_u32 v{vXP+3}, 14*1024, v{vXP+1}
s_lshr_b32 s{sT0}, s{sW}, 2
s_lshl_b32 s{sXP}, s{sT0}, 15
s_add_u32 s{sXP}, s{sXP}, s{sXB}
v_and_b32 v34, 7, v{vLANE}
v_bfe_u32 v35, v{vLANE}, 4, 1
v_lshlrev_b32 v35, 2, v35
v_xor_b32 v34, v34, v35
v_lshlrev_b32 v34, 4, v34
v_lshl_add_u32 v{vDV}, v32, 10, v34
v_add_u32 v{vDV+1}, 7*1024, v{vDV}
v_add_u32 v{vDV+2}, 14*1024, v{vDV}
v_add_u32 v{vDV+3}, 21*1024, v{vDV}
v_lshrrev_b32 v33, 5, v{vLANE}
v_lshlrev_b32 v34, 12, v33
v_bfe_u32 v35, v{vLANE}, 4, 1
v_lshl_add_u32 v34, v35, 10, v34
v_bfe_u32 v37, v{vLANE}, 2, 2
v_lshl_add_u32 v34, v37, 7, v34
v_bfe_u32 v38, v{vLANE}, 3, 2
s_and_b32 s{sT1}, s{sW}, 3
v_xor_b32 v38, s{sT1}, v38
v_lshl_add_u32 v34, v38, 5, v34
v_and_b32 v38, 1, v{vLANE}
v_lshl_add_u32 v34, v38, 4, v34
v_bfe_u32 v38, v{vLANE}, 1, 1
v_lshl_add_u32 v{vWR}, v38, 3, v34
; vXR[ks] (stage layout) = g*16384 + bit4*4096 + 2048 + (l&15)*128 + ((2ks+h)^z)*16
v_bfe_u32 v38, v{vLANE}, 1, 3
v_xor_b32 v38, v38, v33
v_lshlrev_b32 v38, 4, v38
v_and_b32 v39, 15, v{vLANE}
v_lshl_add_u32 v38, v39, 7, v38
v_lshl_add_u32 v38, v35, 12, v38
s_lshl_b32 s{sT1}, s{sT0}, 14
s_add_u32 s{sT1}, s{sT1}, 2048
v_add_u32 v{vXR}, s{sT1}, v38
v_xor_b32 v{vXR+1}, 32, v{vXR}
v_xor_b32 v{vXR+2}, 64, v{vXR}
v_xor_b32 v{vXR+3}, 96, v{vXR}
v_lshl_add_u32 v38, v33, 3, v37
v_lshlrev_b32 v38, 7, v38
v_bfe_u32 v39, v{vLANE}, 3, 1
v_lshl_add_u32 v38, v39, 6, v38
v_lshl_add_u32 v38, v35, 5, v38
v_and_b32 v39, 3, v{vLANE}
v_lshl_add_u32 v38, v39, 3, v38
v_add_u32 v{vD0}, s{sM0W}, v38
v_xor_b32 v{vD1}, 64, v{vD0}
v_lshlrev_b32 v{vL16}, 4, v{vLANE}
v_mov_b32 v{vC1}, {f2h(C1)}
s_mov_b32 s{sC2}, {f2h(C2)}
v_mov_b32 v{vZERO}, 0
s_lshl_b32 s{sHST}, s{sMT}, 3
s_lshl_b32 s{sT1}, s{sT0}, 1
s_add_u32 s{sHST}, s{sHST}, s{sT1}
s_mul_i32 s{sHST}, s{sHST}, 112
s_lshl_b32 s{sT1}, s{sCB}, 2
s_add_u32 s{sHST}, s{sHST}, s{sT1}
s_and_b32 s{sT1}, s{sW}, 3
s_add_u32 s{sHST}, s{sHST}, s{sT1}
s_lshr_b32 s{sT0}, s{sIDX}, 2
s_and_b32 s{sT1}, s{sIDX}, 3
s_lshl_b32 s{sT2}, s{sT1}, 1
s_add_u32 s{sT2}, s{sT2}, s{sT0}
s_mul_i32 s{sSPIN}, s{sW}, {224*1024}
s_lshl_b32 s{sT0}, s{sT0}, 7
s_add_u32 s{sSPIN}, s{sSPIN}, s{sT0}
""")
    for q in range(7):
        a(f"""s_cmp_ge_u32 s{sT2}, 7
s_cselect_b32 s{sT0}, 7, 0
s_sub_u32 s{sT2}, s{sT2}, s{sT0}
s_lshl_b32 s{sHQ+q}, s{sT2}, 11
s_lshl_b32 s{sDQ+q}, s{sT2}, 15
s_add_u32 s{sDQ+q}, s{sDQ+q}, s{sSPIN}
s_add_u32 s{sT2}, s{sT2}, 1""")
    a(f"""
s_lshl_b32 s{sT0}, s{sXCD}, 3
s_add_u32 s{sT0}, s{sT0}, s{sT1}
s_mul_i32 s{sT0}, s{sT0}, 112
s_mul_i32 s{sT1}, s{sW}, 14
s_add_u32 s{sFST}, s{sT0}, s{sT1}
v_min_u32 v38, 13, v{vLANE}
v_add_u32 v38, s{sFST}, v38
v_lshlrev_b32 v38, 3, v38
v_add_u32 v{vPFE}, {FLAG_OFF}, v38
v_add_u32 v{vPFL}, {4*112*8}, v{vPFE}
s_cmp_ge_u32 s{sIDX}, 28
s_cbranch_scc1 L_idle
""")
    cur_base = [0]
    def rebase(B, regs):
        nb = (B // 65536) * 65536
        if nb != cur_base[0]:
            d = nb - cur_base[0]
            for r in regs:
                a(f"v_add_u32 v{r}, {d & 0xffffffff}, v{r}")
            cur_base[0] = nb
        return B - nb
    def R(p, ks, off):
        n = 4 * p + ks; buf = n & 1
        a.lds(f"ds_read_b64_tr_b16 v[{vWF+4*n}:{vWF+4*n+1}], v{vWR} offset:{off+8192*ks}", f"r{n}")
        a.lds(f"ds_read_b64_tr_b16 v[{vWF+4*n+2}:{vWF+4*n+3}], v{vWR} offset:{off+8192*ks+512}", f"r{n}")
        for b in range(2):
            r = vXF + 8 * buf + 4 * b
            a.lds(f"ds_read_b128 v[{r}:{r+3}], v{vXR+ks} offset:{off+8192*b}", f"r{n}")
    def M(n):
        buf = n & 1
        a.wait_lg(f"r{n}")
        for b in range(2):
            r = vXF + 8 * buf + 4 * b; acc = vACC + 16 * b
            c = "0" if n == 0 else f"v[{acc}:{acc+15}]"
            a(f"v_mfma_f32_32x32x16_bf16 v[{acc}:{acc+15}], v[{vWF+4*n}:{vWF+4*n+3}], v[{r}:{r+3}], {c}")
    for p in range(8):
        q = p + 2
        setup = dma_stage_setup(q) if q < 8 else dma_x_setup(q)
        dm = dma_stage(q) if q < 8 else dma_x(q)
        for s in setup: a(s)
        off = rebase(slotbase(p % 5), [vWR, vXR, vXR+1, vXR+2, vXR+3])
        a.wait_vm(f"p{p}")
        if p == 0: a.stamp("p0 landed")
        a("s_barrier")
        if p in (0, 4): a.stamp(f"stage{p}")
        for ks in range(4):
            R(p, ks, off)
            a.vmem(dm[ks], f"p{q}")
            if 4 * p + ks > 0: M(4 * p + ks - 1)
        if p == 3:
            a.vmem(f"buffer_load_dword v{vTAGL}, v{vZERO}, s[{SDBG}:{SDBG+3}], 0 offen sc1", "tag")
    a(f"v_bfe_u32 v60, v{vLANE}, 4, 1\nv_lshlrev_b32 v60, 11, v60\nv_add_u32 v60, 2048, v60")
    for k in range(4): a(f"v_sub_u32 v{vXR+k}, v{vXR+k}, v60")
    def get_tag():
        lab = a.newlabel("L_tag")
        a.wait_vm("tag")
        a(f"""v_readfirstlane_b32 s{sTAG}, v{vTAGL}
s_mov_b32 s{sSPIN}, 0
s_cmp_lg_u32 s{sTAG}, 0
s_cbranch_scc1 {lab}_ok
{lab}_spin:
buffer_load_dword v{vTAGL}, v{vZERO}, s[{SDBG}:{SDBG+3}], 0 offen sc1
s_add_u32 s{sSPIN}, s{sSPIN}, 1
s_waitcnt vmcnt(0)
v_readfirstlane_b32 s{sTAG}, v{vTAGL}
s_cmp_lg_u32 s{sTAG}, 0
s_cbranch_scc1 {lab}_ok
s_cmp_lt_u32 s{sSPIN}, {spin}
s_cbranch_scc1 {lab}_spin
{lab}_ok:
s_xor_b32 s{sTAG2}, s{sTAG}, 0x5bd1e995
v_mov_b32 v{vTAG}, s{sTAG}
v_mov_b32 v{vTAG+1}, s{sTAG2}""")
    def hstore(blkoff_expr, tag):
        for s in blkoff_expr: a(s)
        a(f"s_lshl_b32 s{sT2}, s{sT2}, 10")
        a.vmem(f"buffer_store_dwordx4 v[{vOUT}:{vOUT+3}], v{vL16}, s[{SWS}:{SWS+3}], s{sT2} offen sc1", tag)
    def flag(blkoff_expr, tag):
        for s in blkoff_expr: a(s)
        a(f"s_lshl_b32 s{sT2}, s{sT2}, 3\ns_add_u32 s{sT2}, s{sT2}, {FLAG_OFF}")
        a.wait_vm(tag)
        a("s_mov_b64 exec, 1")
        a.vmem(f"buffer_store_dwordx2 v[{vTAG}:{vTAG+1}], v{vZERO}, s[{SWS}:{SWS+3}], s{sT2} offen sc1", "flag")
        a("s_mov_b64 exec, -1")
    def hidx(e):
        if e == 0: return [f"s_mov_b32 s{sT2}, s{sHST}"]
        if e == 1: return [f"s_add_u32 s{sT2}, s{sHST}, 112"]
        base = (4 if e == 2 else 6) * 112
        return [f"s_lshr_b32 s{sT2}, s{sW}, 2", f"s_mul_i32 s{sT2}, s{sT2}, 112",
                f"s_sub_u32 s{sT2}, s{sHST}, s{sT2}", f"s_add_u32 s{sT2}, s{sT2}, {base}"]
    dbase = [0]
    def dread(q):
        B = slotbase(DSLOT[q]); nb = (B // 65536) * 65536
        L = []
        if nb != dbase[0]:
            d = nb - dbase[0]
            L += [("valu", f"v_add_u32 v{vD0}, {d & 0xffffffff}, v{vD0}"), ("valu", f"v_add_u32 v{vD1}, {d & 0xffffffff}, v{vD1}")]
            dbase[0] = nb
        off = B - nb
        for st in range(2):
            for nb2 in range(2):
                r = vWF + 16 * q + 8 * st + 4 * nb2
                for rd in range(2):
                    L.append(("lds", f"ds_read_b64_tr_b16 v[{r+2*rd}:{r+2*rd+1}], v{vD0+nb2} offset:{off+2048*st+512*rd}", f"d{q}"))
        return L
    ACCS = [vACC + 32, vACC + 32, vACC, vACC]
    EPI = [vACC, vACC + 16, vACC + 32, None]
    LAG = 2
    pend = [("S", 31)]
    def MP(P, n):
        buf = n & 3; r = vXF + 4 * buf; acc = ACCS[P]
        pos = 16 * (P & 1) + n
        a.wait_lg(f"x{P}_{n}")
        c = "0" if pos == 0 else f"v[{acc}:{acc+15}]"
        a(f"v_mfma_f32_32x32x16_bf16 v[{acc}:{acc+15}], v[{vWF+4*pos}:{vWF+4*pos+3}], v[{r}:{r+3}], {c}")
    def run_pending(keep):
        while len(pend) > keep:
            P, n = pend.pop(0)
            if P == "S": M(n)
            else: MP(P, n)
    for P in range(4):
        q = 8 + P
        off = rebase(slotbase(q % 5), [vXR, vXR+1, vXR+2, vXR+3])
        a.wait_vm(f"p{q}")
        if P > 0: a.wait_lg(f"x{P-1}_15")
        a("s_barrier")
        a.stamp(f"P{P}")
        extra = [[] for _ in range(16)]
        if EPI[P] is not None:
            E = epi_instrs(EPI[P]); first = 6
            per = -(-len(E) // (15 - first))
            for i, s in enumerate(E): extra[first + i // per].append(("valu", s))
            extra[15].append(("hst", P))
        def put_dma(step0, setup, dm, tag, stride=2):
            extra[step0].insert(0, ("setup", setup))
            for j in range(4): extra[step0 + j * stride + (0 if j else 0)].append(("dma", dm[j], tag))
        if P == 0:
            put_dma(0, dma_x_setup(10), dma_x(10), "p10"); put_dma(8, dma_x_setup(11), dma_x(11), "p11")
            extra[1].append(("tag",))
        elif P == 1:
            put_dma(0, dma_d_setup(0), dma_d(0), "D0"); put_dma(8, dma_d_setup(1), dma_d(1), "D1")
            extra[13].append(("flag", 0))
        elif P == 2:
            put_dma(0, dma_d_setup(2), dma_d(2), "D2")
            extra[13].append(("flag", 1))
        elif P == 3:
            put_dma(0, dma_d_setup(3), dma_d(3), "D3", stride=1)
            extra[3].append(("dread", 0)); extra[5].append(("dread", 1)); extra[7].append(("dread", 2))
            extra[8].append(("waitlg", "d0"))
            put_dma(8, dma_d_setup(4), dma_d(4), "D4", stride=2)
            extra[12].append(("flag", 2)); extra[13].append(("dread", 3))
        for n in range(16):
            c = n >> 2; ks = n & 3; r = vXF + 4 * (n & 3)
            if P == 0 and n < 2:
                pass
            if P == 0 and n == 2: run_pending(2)
            a.lds(f"ds_read_b128 v[{r}:{r+3}], v{vXR+ks} offset:{off+4096*c}", f"x{P}_{n}")
            pend.append((P, n))
            run_pending(LAG)
            ex = extra[n]
            for e in [x for x in ex if x[0] == "waitlg"]: a.wait_lg(e[1])
            for e in [x for x in ex if x[0] == "setup"]:
                for s in e[1]: a(s)
                a("s_nop 0")
            for e in ex:
                if e[0] == "valu": a(e[1])
                elif e[0] == "dma": a.vmem(e[1], e[2])
                elif e[0] == "tag": get_tag()
                elif e[0] == "hst": hstore(hidx(e[1]), f"h{e[1]}")
                elif e[0] == "flag": flag(hidx(e[1]), f"h{e[1]}")
                elif e[0] == "dread":
                    a.wait_vm(f"D{e[1]}")
                    for it in dread(e[1]):
                        if it[0] == "valu": a(it[1])
                        else: a.lds(it[1], it[2])
    run_pending(0)
    a.stamp("P3 end")
    a.wait_lg("d2")
    for s in dma_d_setup(5): a(s)
    a("s_nop 7")
    dm = dma_d(5)
    a.vmem(dm[0], "D5")
    a("s_nop 3")
    E = epi_instrs(vACC)
    for i, s in enumerate(E):
        a(s)
        if i in (16, 36, 52): a.vmem(dm[1 + (i > 16) + (i > 36)], "D5")
    hstore(hidx(3), "h3")
    for s in dma_d_setup(6): a(s)
    a("s_nop 0")
    for s in dma_d(6): a.vmem(s, "D6")
    flag(hidx(3), "h3")
    a.stamp("flag3")
    a("s_branch L_ph2")
    saved = (list(a.vm), list(a.lg), dbase[0])
    a.label("L_idle")
    a.vm = []; a.lg = []; dbase[0] = 0
    a(f"""s_cmp_lg_u32 s2, 224
s_cbranch_scc1 L_notag
s_cmp_lg_u32 s{sW}, 0
s_cbranch_scc1 L_notag
s_mov_b32 s{sT0}, {EPOCH_OFF}
buffer_load_dword v60, v{vZERO}, s[{SWS}:{SWS+3}], s{sT0} offen sc1
s_waitcnt vmcnt(0)
v_add_u32 v60, 0x9e3779b9, v60
v_or_b32 v60, 1, v60
s_mov_b64 exec, 1
buffer_store_dword v60, v{vZERO}, s[{SDBG}:{SDBG+3}], 0 offen sc1
buffer_store_dword v60, v{vZERO}, s[{SWS}:{SWS+3}], s{sT0} offen sc1
s_mov_b64 exec, -1
L_notag:
s_add_u32 s{sT0}, s{sXB}, {128*1024+2048}
s_add_u32 s{sT0}, s{sT0}, s{sM0W}""")
    for b in range(4):
        for j in range(4):
            r = 64 + 16 * b + 4 * j
            a(f"buffer_load_dwordx4 v[{r}:{r+3}], v{vL16}, s[{SX}:{SX+3}], s{sT0} offen offset:{1024*j}")
        a(f"s_add_u32 s{sT0}, s{sT0}, 32768")
    for q in range(4):
        for s in dma_d_setup(q): a(s)
        a("s_nop 0")
        for s in dma_d(q): a(s)
    a.wait_all()
    for q in range(4):
        for it in dread(q): a(it[1])
    a.wait_all()
    for q in range(4, 7):
        for s in dma_d_setup(q): a(s)
        a("s_nop 0")
        for s in dma_d(q): a(s)
    a.vmem(f"buffer_load_dword v{vTAGL}, v{vZERO}, s[{SDBG}:{SDBG+3}], 0 offen sc1", "tag")
    get_tag()
    a.wait_all()
    assert dbase[0] == saved[2]
    a.vm, a.lg = saved[0], saved[1]
    a.label("L_ph2")
    def poll(vaddr):
        lab = a.newlabel("L_poll")
        a(f"""s_mov_b32 s{sSPIN}, 0
{lab}:
buffer_load_dwordx2 v[{vPOLL}:{vPOLL+1}], v{vaddr}, s[{SWS}:{SWS+3}], 0 offen sc1
s_add_u32 s{sSPIN}, s{sSPIN}, 1
s_waitcnt vmcnt(0)
v_cmp_eq_u32 vcc, s{sTAG}, v{vPOLL}
v_cmp_eq_u32 s[{sT0}:{sT0+1}], s{sTAG2}, v{vPOLL+1}
s_and_b64 vcc, vcc, s[{sT0}:{sT0+1}]
s_cmp_eq_u64 vcc, -1
s_cbranch_scc1 {lab}_ok
s_cmp_lt_u32 s{sSPIN}, {spin}
s_cbranch_scc1 {lab}
{lab}_ok:""")
        a.vm = []
    HFE = [96 + 4 * i for i in range(8)] + [240 + 4 * i for i in range(4)] + [32, 36]
    HFL = [40 + 4 * i for i in range(6)] + HFE[:8]
    a(f"s_lshl_b32 s{sT2}, s{sFST}, 10\nv_add_u32 v{vG}, s{sT2}, v{vL16}\nv_add_u32 v{vU}, {4*112*1024}, v{vG}")
    poll(vPFE)
    a.stamp("pollE")
    def hload(vaddr, regs, pos, t):
        r = regs[pos]
        a.vmem(f"buffer_load_dwordx4 v[{r}:{r+3}], v{vaddr}, s[{SWS}:{SWS+3}], s{sHQ+(pos>>1)} offen offset:{1024*(pos&1)} sc1", f"H{t}{pos}")
    for pos in range(14): hload(vG, HFE, pos, "E")
    for q in range(4, 7):
        for it in dread(q):
            if it[0] == "valu": a(it[1])
            else: a.lds(it[1], it[2])
    def mf2(regs, pos, t):
        a.wait_vm(f"H{t}{pos}")
        a.wait_lg(f"d{pos>>1}")
        r = regs[pos]
        for nb2 in range(2):
            acc = vACC + 16 * nb2; w = vWF + 8 * pos + 4 * nb2
            c = "0" if pos == 0 else f"v[{acc}:{acc+15}]"
            a(f"v_mfma_f32_32x32x16_bf16 v[{acc}:{acc+15}], v[{r}:{r+3}], v[{w}:{w+3}], {c}")
    def dump(t):
        if t == 0:
            a(f"s_mov_b32 m0, s{sM0W}"); base = 0
        else:
            a(f"s_add_u32 m0, s{sM0W}, 36860"); base = 65536 - 36860
        a("s_nop 15")
        for i in range(32):
            a.lds(f"ds_write_addtid_b32 v{vACC+i} offset:{base + 32768*(i>>4) + 256*(i&15)}", f"w{t}")
    for pos in range(14): mf2(HFE, pos, "E")
    a.stamp("E done")
    dump(0)
    poll(vPFL)
    a.stamp("pollL")
    for pos in range(14): hload(vU, HFL, pos, "L")
    a.wait_lg("w0")
    for pos in range(14): mf2(HFL, pos, "L")
    a.stamp("L done")
    dump(1)
    a(f"""
v_bfe_u32 v32, v{vLANE}, 3, 1
v_lshlrev_b32 v32, 15, v32
v_lshrrev_b32 v33, 5, v{vLANE}
s_lshl_b32 s{sT0}, s{sW}, 1
v_add_u32 v33, s{sT0}, v33
v_lshl_add_u32 v32, v33, 8, v32
v_bfe_u32 v34, v{vLANE}, 4, 1
v_lshl_add_u32 v32, v34, 7, v32
v_and_b32 v35, 7, v{vLANE}
v_lshl_add_u32 v2, v35, 4, v32
v_add_u32 v3, 65536, v2
v_lshrrev_b32 v35, 2, v33
v_lshlrev_b32 v35, 3, v35
v_lshl_add_u32 v35, v34, 2, v35
v_and_b32 v36, 3, v33
v_add_u32 v35, v35, v36
v_lshlrev_b32 v35, 10, v35
v_and_b32 v36, 15, v{vLANE}
v_lshl_add_u32 v4, v36, 3, v35
s_lshl_b32 s{sT0}, s{sXCD}, 3
s_and_b32 s{sT1}, s{sIDX}, 3
s_add_u32 s{sT0}, s{sT0}, s{sT1}
s_lshl_b32 s{sT0}, s{sT0}, 15
s_lshr_b32 s{sT1}, s{sIDX}, 2
s_lshl_b32 s{sT1}, s{sT1}, 7
s_add_u32 s{sT0}, s{sT0}, s{sT1}
s_add_u32 s{sT1}, s{sT0}, {4*32768}
s_waitcnt lgkmcnt(0)
s_barrier
""")
    a.lg = []
    for t in range(2):
        for p in range(8):
            r = 64 + 32 * t + 4 * p
            a.lds(f"ds_read_b128 v[{r}:{r+3}], v{2+t} offset:{4096*p}", f"q{t}_{p}")
    for t in range(2):
        b = 64 + 32 * t
        for p in range(1, 8):
            a.wait_lg(f"q{t}_{p}")
            for j in range(4): a(f"v_add_f32 v{b+j}, v{b+j}, v{b+4*p+j}")
        a(f"v_cvt_pk_bf16_f32 v{40+2*t}, v{b}, v{b+1}\nv_cvt_pk_bf16_f32 v{41+2*t}, v{b+2}, v{b+3}")
        a(f"buffer_store_dwordx2 v[{40+2*t}:{41+2*t}], v4, s[{SO}:{SO+3}], s{sT0+t} offen")
    if stamps:
        a("s_waitcnt vmcnt(0)")
        a.stamp("end")
        a("s_memrealtime s[16:17]\ns_waitcnt lgkmcnt(0)")
        for i in range(a.nst): a(f"v_writelane_b32 v{vST}, s{STREGS[i]}, {i}")
        a(f"v_writelane_b32 v{vST}, s18, 30\nv_writelane_b32 v{vST}, s16, 31")
        a(f"""s_lshl_b32 s{sT0}, s2, 10
s_lshl_b32 s{sT1}, s{sW}, 7
s_add_u32 s{sT0}, s{sT0}, s{sT1}
s_add_u32 s{sT0}, s{sT0}, {STAMP_OFF}
v_lshlrev_b32 v5, 2, v{vLANE}
s_mov_b64 exec, 0xffffffff
buffer_store_dword v{vST}, v5, s[{SWS}:{SWS+3}], s{sT0} offen""")
    a("L_end:\ns_endpgm")
    a.raw(".p2align 8\n.fill 4096, 4, 0xbf800000\n")
    a.raw(kernel_desc(NAME, 256))
    return a.text(), a.stnames
if __name__ == "__main__":
    t, _ = gen(); open("v1.s", "w").write(t)
    t, n = gen(stamps=True); open("v1_st.s", "w").write(t); open("v1_st.names", "w").write(",".join(n)); print(n)
```

```python
import sys, struct, math
from asmlib import *
def f2h(f): return "0x%08x" % struct.unpack("<I", struct.pack("<f", f))[0]
C1 = -2.0 * math.log2(math.e) * math.sqrt(2.0 / math.pi)
C2 = C1 * 0.044715
WS_REC = 2048 * 1792 * 2
STAMP_OFF = 128 << 20
NAME = "standalone__geglu_ffn__prompt_kernel"
PHYS = [0, 4, 2, 3, 1]
def slotbase(l): return PHYS[l] * 32768

sW = 3
SX, SG, SU, SD, SO, SWS, SDBG = 20, 24, 28, 32, 36, 40, 44
sXCD, sIDX, sMT, sCB, sROT, sXB, sWB, sM0W, sT0, sT1, sT2, sC2 = 48, 49, 50, 51, 52, 53, 54, 55, 56, 57, 58, 59
sBLK, sHB, sHST, sG112, sSPIN, sXP = 60, 61, 62, 63, 64, 65
sHQ = 66
sDQ = 73
sCUR, sPEND, sNXT = sMT, sCB, sROT
vLANE, vG, vU, vXS, vXP, vDV, vWR, vXR, vDR, vL16, vC1, vINI, vZERO, vST, vHL, vH, vMAX = 1, 2, 3, 4, 6, 10, 14, 15, 19, 23, 24, 25, 26, 27, 28, 29, 30
vHN = 31
vSENT = 124
vXF, vTMP, vOUT, vACC, vWF = 32, 48, 56, 64, 128
vHF = 96
STREGS = list(range(80, 102, 2)) + [4, 6, 8, 10, 12, 14]

class Gen(Asm):
    def __init__(self, stamps=False):
        super().__init__()
        self.vm = []; self.lg = []
        self.stamps = stamps; self.nst = 0; self.stnames = []
    def vmem(self, s, tag):
        self(s); self.vm.append(tag)
    def lds(self, s, tag):
        self(s); self.lg.append(tag)
    def _cnt(self, q, tag):
        idx = [i for i, t in enumerate(q) if t == tag]
        if not idx: return None
        return len(q) - 1 - idx[-1]
    def wait_vm(self, tag):
        n = self._cnt(self.vm, tag)
        if n is None: return
        assert n <= 63, n
        self(f"s_waitcnt vmcnt({n})"); self.vm = self.vm[len(self.vm) - n:] if n else []
    def wait_lg(self, tag):
        n = self._cnt(self.lg, tag)
        if n is None: return
        n = min(n, 15)
        self(f"s_waitcnt lgkmcnt({n})"); self.lg = self.lg[len(self.lg) - n:] if n else []
    def wait_all(self):
        self("s_waitcnt vmcnt(0) lgkmcnt(0)"); self.vm = []; self.lg = []
    def stamp(self, name):
        if not self.stamps: return
        r = STREGS[self.nst]
        self(f"s_memtime s[{r}:{r+1}]"); self.nst += 1; self.stnames.append(name)

def epi_instrs(acc):
    L = []
    t = vTMP
    for j in range(8): L.append(f"v_mul_f32 v{t+j}, v{acc+j}, v{acc+j}")
    for j in range(8): L.append(f"v_fma_f32 v{t+j}, v{t+j}, s{sC2}, v{vC1}")
    for j in range(8): L.append(f"v_mul_f32 v{t+j}, v{t+j}, v{acc+j}")
    for j in range(8):
        L.append(f"v_exp_f32 v{t+j}, v{t+j}")
        L.append(f"v_mul_f32 v{acc+j}, v{acc+j}, v{acc+8+j}")
    for j in range(8): L.append(f"v_add_f32 v{t+j}, 1.0, v{t+j}")
    for j in range(8): L.append(f"v_rcp_f32 v{t+j}, v{t+j}")
    for j in range(8): L.append(f"v_mul_f32 v{t+j}, v{t+j}, v{acc+j}")
    for j in range(4): L.append(f"v_cvt_pk_bf16_f32 v{vOUT+j}, v{t+2*j}, v{t+2*j+1}")
    for j in range(4): L.append(f"v_min_u32 v{vOUT+j}, -2, v{vOUT+j}")
    return L

def epi_pk(acc):
    L = []
    t = vTMP
    P = lambda r: f"v[{r}:{r+1}]"
    for j in range(0, 8, 2): L.append(f"v_pk_mul_f32 {P(t+j)}, {P(acc+j)}, {P(acc+j)}")
    for j in range(0, 8, 2): L.append(f"v_pk_fma_f32 {P(t+j)}, {P(t+j)}, s[{sT2}:{sC2}], v[{vC1}:{vC1+1}] op_sel:[0,1,0] op_sel_hi:[1,1,0]")
    for j in range(0, 8, 2): L.append(f"v_pk_mul_f32 {P(t+j)}, {P(t+j)}, {P(acc+j)}")
    for j in range(8):
        L.append(f"v_exp_f32 v{t+j}, v{t+j}")
        if j & 1: L.append(f"v_pk_mul_f32 {P(acc+j-1)}, {P(acc+j-1)}, {P(acc+8+j-1)}")
    for j in range(0, 8, 2): L.append(f"v_pk_add_f32 {P(t+j)}, {P(t+j)}, 1.0 op_sel_hi:[1,0]")
    for j in range(8): L.append(f"v_rcp_f32 v{t+j}, v{t+j}")
    for j in range(0, 8, 2): L.append(f"v_pk_mul_f32 {P(t+j)}, {P(t+j)}, {P(acc+j)}")
    for j in range(4): L.append(f"v_cvt_pk_bf16_f32 v{vOUT+j}, v{t+2*j}, v{t+2*j+1}")
    for j in range(4): L.append(f"v_min_u32 v{vOUT+j}, -2, v{vOUT+j}")
    return L

def gen(stamps=False, spin=100000, polw="", rotmode=1, sched=None, prio=0, HLAG=5, pkfinal=1):
    a = Gen(stamps)
    a.raw(HEADER + f"; @launch grid=(256,1,1) block=(512,1,1) lds=163840\n.amdgcn_target \"amdgcn-amd-amdhsa--gfx950\"\n" + kernel_begin(NAME))
    if stamps:
        a("s_memrealtime s[18:19]")
    a.stamp("start")
    rot = (f"s_lshl_b32 s{sROT}, s{sT0}, 1\ns_add_u32 s{sROT}, s{sROT}, s{sT1}" if rotmode == 1 else
           f"s_add_u32 s{sROT}, s{sT0}, s{sT1}\ns_lshl_b32 s{sROT}, s{sROT}, 1")
    a(f"""
s_load_dwordx8 s[4:11], s[0:1], 0
s_load_dwordx4 s[12:15], s[0:1], 32
s_load_dwordx2 s[16:17], s[0:1], 48
s_cmp_ge_u32 s2, 256
s_cbranch_scc1 L_end
s_getpc_b64 s[{sT0}:{sT0+1}]
v_lshrrev_b32 v60, 6, v0
s_and_b32 s{sT2}, s2, 0x78
v_add_u32 v61, s{sT2}, v60
v_lshlrev_b32 v61, 7, v61
global_load_dword v62, v61, s[{sT0}:{sT0+1}]
v_readfirstlane_b32 s{sW}, v60
v_and_b32 v{vLANE}, 63, v0
s_and_b32 s{sXCD}, s2, 7
s_lshr_b32 s{sIDX}, s2, 3
s_and_b32 s{sMT}, s{sXCD}, 1
s_lshl_b32 s{sMT}, s{sMT}, 2
s_and_b32 s{sT0}, s{sIDX}, 3
s_add_u32 s{sMT}, s{sMT}, s{sT0}
s_lshr_b32 s{sCB}, s{sXCD}, 1
s_mul_i32 s{sCB}, s{sCB}, 7
s_lshr_b32 s{sT1}, s{sIDX}, 2
s_add_u32 s{sCB}, s{sCB}, s{sT1}
{rot}
s_lshl_b32 s{sXB}, s{sMT}, 18
s_lshl_b32 s{sWB}, s{sCB}, 7
s_lshl_b32 s{sM0W}, s{sW}, 12
v_lshrrev_b32 v32, 3, v{vLANE}
v_lshl_add_u32 v33, v60, 3, v32
v_mul_u32_u24 v33, 3584, v33
v_bfe_u32 v34, v{vLANE}, 1, 2
v_bfe_u32 v35, v{vLANE}, 4, 1
v_xor_b32 v34, v34, v35
v_lshlrev_b32 v34, 5, v34
v_and_b32 v35, 1, v{vLANE}
v_lshl_add_u32 v40, v35, 4, v34
v_add_u32 v{vG}, v33, v40
v_xor_b32 v34, 64, v40
v_add_u32 v{vU}, v33, v34
v_and_b32 v34, 7, v{vLANE}
v_lshrrev_b32 v35, 4, v{vLANE}
v_xor_b32 v34, v34, v35
v_lshlrev_b32 v34, 4, v34
v_lshl_add_u32 v36, v32, 10, v34
v_lshl_add_u32 v{vXS}, v60, 14, v36
v_add_u32 v{vXS+1}, 7*1024, v{vXS}
v_xor_b32 v{vXS+1}, 64, v{vXS+1}
v_lshlrev_b32 v{vL16}, 4, v{vLANE}
s_lshr_b32 s{sT2}, s{sW}, 2
s_mul_i32 s{sG112}, s{sT2}, {112*1024}
s_mul_i32 s{sHST}, s{sMT}, {8*112}
s_lshl_b32 s{sT1}, s{sCB}, 2
s_add_u32 s{sHST}, s{sHST}, s{sT1}
s_and_b32 s{sT1}, s{sW}, 3
s_add_u32 s{sHST}, s{sHST}, s{sT1}
s_lshl_b32 s{sHST}, s{sHST}, 10
s_add_u32 s{sHST}, s{sHST}, s{sG112}
s_waitcnt lgkmcnt(0)
s_sub_u32 s{SX}, s4, 2048
s_subb_u32 s{SX+1}, s5, 0
s_and_b32 s{SX+1}, s{SX+1}, 0xffff
s_mov_b32 s{SX+2}, {2048*512*2+2048}
s_mov_b32 s{SX+3}, 0x00020000
s_mov_b32 s{SG}, s6
s_and_b32 s{SG+1}, s7, 0xffff
s_mov_b32 s{SG+2}, {512*1792*2}
s_mov_b32 s{SG+3}, 0x00020000
s_sub_u32 s{SU}, s8, 1024
s_subb_u32 s{SU+1}, s9, 0
s_and_b32 s{SU+1}, s{SU+1}, 0xffff
s_mov_b32 s{SU+2}, {512*1792*2+1024}
s_mov_b32 s{SU+3}, 0x00020000
""")
    srd(a, SWS, 16, WS_REC if not stamps else 256 << 20)
    a(f"s_cmp_ge_u32 s{sIDX}, 28\ns_cbranch_scc1 L_skip01")
    a.vm.append("pf")
    def dma_stage_setup(q):
        return [f"s_add_u32 s{sT0}, s{sROT}, {q}",
                f"s_and_b32 s{sT0}, s{sT0}, 7",
                f"s_mul_i32 s{sT1}, s{sT0}, {64*3584}",
                f"s_add_u32 s{sT1}, s{sT1}, s{sWB}",
                f"s_lshl_b32 s{sT0}, s{sT0}, 7",
                f"s_add_u32 m0, s{sM0W}, {slotbase(q % 5)}",
                f"s_add_u32 s{sT0}, s{sT0}, s{sXB}"]
    def dma_stage(q):
        return [f"buffer_load_dwordx4 v{vG}, s[{SG}:{SG+3}], s{sT1} offen{polw} lds",
                f"buffer_load_dwordx4 v{vU}, s[{SU}:{SU+3}], s{sT1} offen offset:1024{polw} lds",
                f"buffer_load_dwordx4 v{vXS}, s[{SX}:{SX+3}], s{sT0} offen offset:2048 lds",
                f"buffer_load_dwordx4 v{vXS+1}, s[{SX}:{SX+3}], s{sT0} offen offset:3072 lds"]
    def dma_x_setup(q):
        half = (q - 8) & 1; bb = 4 + 2 * ((q - 8) >> 1)
        return [f"s_and_b32 s{sT0}, s{sW}, 3",
                f"s_add_u32 s{sT0}, s{sT0}, s{sROT}",
                f"s_add_u32 s{sT0}, s{sT0}, {4*half}",
                f"s_and_b32 s{sT0}, s{sT0}, 7",
                f"s_lshl_b32 s{sT0}, s{sT0}, 7",
                f"s_add_u32 s{sT0}, s{sT0}, s{sXP}",
                f"s_add_u32 m0, s{sM0W}, {slotbase(q % 5)}",
                f"s_add_u32 s{sT0}, s{sT0}, {bb*32768}"]
    def dma_x(q):
        return [f"buffer_load_dwordx4 v{vXP+j}, s[{SX}:{SX+3}], s{sT0} offen offset:{1024*j} lds" for j in range(4)]
    DSLOT = [2, 3, 4, 0, 2, 3, 4]
    def dma_d_setup(q):
        return [f"s_add_u32 m0, s{sM0W}, {slotbase(DSLOT[q])}", "s_nop 0"]
    def dma_d(q):
        return [f"buffer_load_dwordx4 v{vDV+j}, s[{SD}:{SD+3}], s{sDQ+q} offen offset:{1024*j} lds" for j in range(4)]
    def hoff(e):
        if e < 2: return [f"s_add_u32 s{sT2}, s{sHST}, s{sG112}"] + ([f"s_add_u32 s{sT2}, s{sT2}, {112*1024}"] if e else [])
        return [f"s_add_u32 s{sT2}, s{sHST}, {(4 if e == 2 else 6)*112*1024}"]
    def hstore(e, tag, src=vOUT):
        for s in hoff(e): a(s)
        a.vmem(f"buffer_store_dwordx4 v[{src}:{src+3}], v{vL16}, s[{SWS}:{SWS+3}], s{sT2} offen sc1", tag)
    for q in (0, 1):
        for s in dma_stage_setup(q): a(s)
        for s in dma_stage(q): a.vmem(s, f"p{q}")
    a.label("L_skip01")
    srd(a, SD, 10, 1792*512*2); srd(a, SO, 12, 2048*512*2); srd(a, SDBG, 14, 256)
    a(f"""
v_add_u32 v{vXP}, 2048, v36
v_add_u32 v{vXP+1}, 7*1024, v{vXP}
v_xor_b32 v{vXP+1}, 64, v{vXP+1}
v_add_u32 v{vXP+2}, 14*1024, v{vXP}
v_add_u32 v{vXP+3}, 14*1024, v{vXP+1}
s_lshr_b32 s{sT0}, s{sW}, 2
s_lshl_b32 s{sXP}, s{sT0}, 15
s_add_u32 s{sXP}, s{sXP}, s{sXB}
v_lshl_add_u32 v{vDV}, v32, 10, v40
v_add_u32 v{vDV+1}, 7*1024, v{vDV}
v_xor_b32 v{vDV+1}, 64, v{vDV+1}
v_add_u32 v{vDV+2}, 14*1024, v{vDV}
v_add_u32 v{vDV+3}, 14*1024, v{vDV+1}
v_lshrrev_b32 v33, 5, v{vLANE}
v_lshlrev_b32 v34, 12, v33
v_bfe_u32 v35, v{vLANE}, 4, 1
v_lshl_add_u32 v34, v35, 10, v34
v_bfe_u32 v37, v{vLANE}, 2, 2
v_lshl_add_u32 v34, v37, 7, v34
v_bfe_u32 v41, v{vLANE}, 3, 2
s_and_b32 s{sT1}, s{sW}, 3
v_xor_b32 v38, s{sT1}, v41
v_lshl_add_u32 v34, v38, 5, v34
v_and_b32 v38, 1, v{vLANE}
v_lshl_add_u32 v34, v38, 4, v34
v_bfe_u32 v38, v{vLANE}, 1, 1
v_lshl_add_u32 v{vWR}, v38, 3, v34
v_bfe_u32 v38, v{vLANE}, 1, 3
v_xor_b32 v38, v38, v33
v_lshlrev_b32 v38, 4, v38
v_and_b32 v39, 15, v{vLANE}
v_lshl_add_u32 v38, v39, 7, v38
v_lshl_add_u32 v38, v35, 12, v38
s_lshl_b32 s{sT1}, s{sT0}, 14
s_add_u32 s{sT1}, s{sT1}, 2048
v_add_u32 v{vXR}, s{sT1}, v38
v_xor_b32 v{vXR+1}, 32, v{vXR}
v_xor_b32 v{vXR+2}, 64, v{vXR}
v_xor_b32 v{vXR+3}, 96, v{vXR}
v_lshrrev_b32 v38, 4, v{vLANE}
v_lshl_add_u32 v38, v38, 3, v37
v_lshlrev_b32 v38, 7, v38
v_lshl_add_u32 v38, v41, 5, v38
v_and_b32 v42, 3, v{vLANE}
v_lshl_add_u32 v38, v42, 3, v38
v_add_u32 v{vDR}, s{sM0W}, v38
v_xor_b32 v{vDR+1}, 32, v{vDR}
v_xor_b32 v{vDR+2}, 64, v{vDR}
v_xor_b32 v{vDR+3}, 96, v{vDR}
v_mov_b32 v{vC1}, {f2h(C1)}
s_mov_b32 s{sC2}, {f2h(C2)}
v_mov_b32 v{vZERO}, 0
v_lshrrev_b32 v38, 4, v{vLANE}
v_lshlrev_b32 v38, 9, v38
v_lshl_add_u32 v38, v39, 4, v38
s_and_b32 s{sT1}, s{sIDX}, 1
s_lshl_b32 s{sT1}, s{sT1}, 8
v_add_u32 v{vHL}, s{sT1}, v38
s_bfe_u32 s{sT1}, s{sIDX}, 0x10001
s_mul_i32 s{sBLK}, s{sT1}, 0x1122
s_add_u32 s{sBLK}, s{sBLK}, 0x6410
s_mul_i32 s{sHB}, s{sXCD}, {8*112}
s_mul_i32 s{sT1}, s{sW}, 14
s_add_u32 s{sHB}, s{sHB}, s{sT1}
s_lshl_b32 s{sHB}, s{sHB}, 10
v_and_b32 v38, 31, v{vLANE}
v_lshlrev_b32 v{vH}, 2, v38
v_mov_b32 v{vSENT}, -1
v_mov_b32 v{vSENT+1}, -1
v_mov_b32 v{vSENT+2}, -1
v_mov_b32 v{vSENT+3}, -1
s_lshr_b32 s{sT0}, s{sIDX}, 2
s_and_b32 s{sT1}, s{sIDX}, 3
s_lshl_b32 s{sT2}, s{sT1}, 1
s_add_u32 s{sT2}, s{sT2}, s{sT0}
s_mul_i32 s{sSPIN}, s{sW}, {224*1024}
s_lshl_b32 s{sT0}, s{sT0}, 7
s_add_u32 s{sSPIN}, s{sSPIN}, s{sT0}
""")
    for q in range(7):
        a(f"""s_cmp_ge_u32 s{sT2}, 7
s_cselect_b32 s{sT0}, 7, 0
s_sub_u32 s{sT2}, s{sT2}, s{sT0}
s_lshl_b32 s{sHQ+q}, s{sT2}, 11
s_lshl_b32 s{sDQ+q}, s{sT2}, 15
s_add_u32 s{sDQ+q}, s{sDQ+q}, s{sSPIN}
s_add_u32 s{sT2}, s{sT2}, 1""")
    a(f"s_cmp_ge_u32 s{sIDX}, 28\ns_cbranch_scc1 L_idle")
    if prio:
        a(f"s_cmp_lt_u32 s{sW}, 4\ns_cbranch_scc1 L_noprio\ns_setprio 1\nL_noprio:")
    cur_base = [0]
    def rebase(B, regs):
        nb = (B // 65536) * 65536
        if nb != cur_base[0]:
            d = nb - cur_base[0]
            for r in regs:
                a(f"v_add_u32 v{r}, {d & 0xffffffff}, v{r}")
            cur_base[0] = nb
        return B - nb
    def R(p, ks, off):
        n = 4 * p + ks; buf = n & 1
        a.lds(f"ds_read_b64_tr_b16 v[{vWF+4*n}:{vWF+4*n+1}], v{vWR} offset:{off+8192*ks}", f"r{n}")
        a.lds(f"ds_read_b64_tr_b16 v[{vWF+4*n+2}:{vWF+4*n+3}], v{vWR} offset:{off+8192*ks+512}", f"r{n}")
        for b in range(2):
            r = vXF + 8 * buf + 4 * b
            a.lds(f"ds_read_b128 v[{r}:{r+3}], v{vXR+ks} offset:{off+8192*b}", f"r{n}")
    def M(n):
        buf = n & 1
        a.wait_lg(f"r{n}")
        for b in range(2):
            r = vXF + 8 * buf + 4 * b; acc = vACC + 16 * b
            c = "0" if n == 0 else f"v[{acc}:{acc+15}]"
            a(f"v_mfma_f32_32x32x16_bf16 v[{acc}:{acc+15}], v[{vWF+4*n}:{vWF+4*n+3}], v[{r}:{r+3}], {c}")
    for p in range(8):
        q = p + 2
        setup = dma_stage_setup(q) if q < 8 else dma_x_setup(q)
        dm = dma_stage(q) if q < 8 else dma_x(q)
        for s in setup: a(s)
        off = rebase(slotbase(p % 5), [vWR, vXR, vXR+1, vXR+2, vXR+3])
        a.wait_vm(f"p{p}")
        a("s_barrier")
        if p in (0, 1, 4): a.stamp(f"stage{p}")
        for ks in range(4):
            if ks == 0: a.vmem(dm[0], f"p{q}")
            R(p, ks, off)
            if ks == 1: a.vmem(dm[1], f"p{q}")
            if 4 * p + ks > 0: M(4 * p + ks - 1)
            if ks >= 2: a.vmem(dm[ks], f"p{q}")
    a(f"v_bfe_u32 v60, v{vLANE}, 4, 1\nv_lshlrev_b32 v60, 11, v60\nv_add_u32 v60, 2048, v60")
    for k in range(4): a(f"v_sub_u32 v{vXR+k}, v{vXR+k}, v60")
    def ini_load():
        a.vmem(f"buffer_load_dword v{vINI}, v{vH}, s[{SDBG}:{SDBG+3}], 0 offen sc1", "inil")
    def ini_check():
        lab = a.newlabel("L_ini")
        a.wait_vm("inil")
        a(f"""v_cmp_ne_u32 vcc, 1, v{vINI}
s_mov_b32 s{sSPIN}, 0
s_cbranch_vccz {lab}_ok
{lab}_spin:
buffer_load_dword v{vINI}, v{vH}, s[{SDBG}:{SDBG+3}], 0 offen sc1
s_add_u32 s{sSPIN}, s{sSPIN}, 1
s_waitcnt vmcnt(0)
v_cmp_ne_u32 vcc, 1, v{vINI}
s_cmp_lt_u32 s{sSPIN}, {spin}
s_cbranch_vccz {lab}_ok
s_cbranch_scc1 {lab}_spin
{lab}_ok:""")
    dbase = [0]
    def dread(q):
        B = slotbase(DSLOT[q]); nb = (B // 65536) * 65536
        L = []
        if nb != dbase[0]:
            d = nb - dbase[0]
            L += [("valu", f"v_add_u32 v{vDR+s}, {d & 0xffffffff}, v{vDR+s}") for s in range(4)]
            dbase[0] = nb
        off = B - nb
        for s in range(4):
            r = vWF + 16 * q + 4 * s
            for rd in range(2):
                L.append(("lds", f"ds_read_b64_tr_b16 v[{r+2*rd}:{r+2*rd+1}], v{vDR+s} offset:{off+512*rd}", f"d{q}"))
        return L
    def do_dread(q):
        a.wait_vm(f"D{q}")
        for it in dread(q):
            if it[0] == "valu": a(it[1])
            else: a.lds(it[1], it[2])
    ACCS = [vACC + 32, vACC + 32, vACC, vACC]
    LAG = 2
    pend = [("S", 31)]
    def MP(P, n):
        buf = n & 3; r = vXF + 4 * buf; acc = ACCS[P]
        pos = 16 * (P & 1) + n
        a.wait_lg(f"x{P}_{n}")
        c = "0" if pos == 0 else f"v[{acc}:{acc+15}]"
        a(f"v_mfma_f32_32x32x16_bf16 v[{acc}:{acc+15}], v[{vWF+4*pos}:{vWF+4*pos+3}], v[{r}:{r+3}], {c}")
    def run_pending(keep):
        while len(pend) > keep:
            P, n = pend.pop(0)
            if P == "S": M(n)
            else: MP(P, n)
    extra = [[] for _ in range(64)]
    for e, (acc, s0, s1) in enumerate(((vACC, 5, 20), (vACC + 16, 20, 37), (vACC + 32, 38, 54))):
        E = epi_instrs(acc)
        for i, s in enumerate(E): extra[s0 + i * (s1 - s0) // len(E)].append(("valu", s))
        extra[s1 - 1].append(("hst", e))
        extra[(1, 21, 39)[e]].append(("sent", e + 1))
    def put_dma(step0, setup, dm, tag, stride=2, pre=None):
        if pre: extra[step0].append(("waitlg", pre))
        extra[step0].append(("setup", setup))
        for j in range(4): extra[step0 + j * stride].append(("dma", dm[j], tag))
    S = dict(p10=(0, 2), D0=(8, 2), p11=(22, 2), D1=(30, 2), D2=(40, 2), D3=(48, 2), D4=(56, 2), r0=51, r1=53, r2=55, r3=61)
    if sched: S.update(sched)
    put_dma(S["p10"][0], dma_x_setup(10), dma_x(10), "p10", S["p10"][1])
    put_dma(S["p11"][0], dma_x_setup(11), dma_x(11), "p11", S["p11"][1])
    for q in range(5):
        put_dma(S[f"D{q}"][0], dma_d_setup(q), dma_d(q), f"D{q}", S[f"D{q}"][1], pre="d0" if q == 4 else None)
    for q in range(4): extra[S[f"r{q}"]].append(("dread", q))
    extra[3].append(("inil",)); extra[17].append(("inic",))
    for P in range(4):
        q = 8 + P
        off = rebase(slotbase(q % 5), [vXR, vXR+1, vXR+2, vXR+3])
        a.wait_vm(f"p{q}")
        if P > 0: a.wait_lg(f"x{P-1}_15")
        else: a.wait_lg("r31")
        a("s_barrier")
        a.stamp(f"P{P}")
        for n in range(16):
            c = n >> 2; ks = n & 3; r = vXF + 4 * (n & 3)
            a.lds(f"ds_read_b128 v[{r}:{r+3}], v{vXR+ks} offset:{off+4096*c}", f"x{P}_{n}")
            pend.append((P, n))
            run_pending(LAG)
            ex = extra[16 * P + n]
            for e in ex:
                if e[0] == "valu": a(e[1])
                elif e[0] == "hst":
                    a.wait_vm(f"s{e[1]+1}")
                    hstore(e[1], f"h{e[1]}")
                elif e[0] == "sent": hstore(e[1], f"s{e[1]}", vSENT)
            for e in ex:
                if e[0] == "waitlg": a.wait_lg(e[1])
                elif e[0] == "setup":
                    for s in e[1]: a(s)
                elif e[0] == "dma": a.vmem(e[1], e[2])
                elif e[0] == "inil": ini_load()
                elif e[0] == "inic": ini_check()
                elif e[0] == "dread": do_dread(e[1])
    run_pending(0)
    a.stamp("P3 end")
    a.wait_lg("d2")
    for s in dma_d_setup(5): a(s)
    a("s_nop 6")
    dm = dma_d(5)
    a.vmem(dm[0], "D5")
    a("s_nop 3")
    E = epi_pk(vACC) if pkfinal else epi_instrs(vACC)
    marks = [len(E) // 4, len(E) // 2, 3 * len(E) // 4]
    for i, s in enumerate(E):
        a(s)
        if i in marks: a.vmem(dm[1 + marks.index(i)], "D5")
    hstore(3, "h3")
    a.stamp("h3 store")
    for s in dma_d_setup(6): a(s)
    for s in dma_d(6): a.vmem(s, "D6")
    a("s_branch L_ph2")
    saved = (list(a.vm), list(a.lg), dbase[0])
    a.label("L_idle")
    a.vm = []; a.lg = []; dbase[0] = 0
    a(f"""s_mul_i32 s{sT0}, s{sXCD}, {8*112}
s_bfe_u32 s{sT1}, s{sIDX}, 0x10001
s_mul_i32 s{sT1}, s{sT1}, 224
s_add_u32 s{sT0}, s{sT0}, s{sT1}
s_and_b32 s{sT1}, s{sIDX}, 1
s_mul_i32 s{sT1}, s{sT1}, 56
s_add_u32 s{sT0}, s{sT0}, s{sT1}
s_mul_i32 s{sT1}, s{sW}, 7
s_add_u32 s{sT0}, s{sT0}, s{sT1}
s_lshl_b32 s{sT0}, s{sT0}, 10
s_add_u32 s{sT1}, s{sT0}, 4096""")
    for j in range(7):
        a(f"buffer_store_dwordx4 v[{vSENT}:{vSENT+3}], v{vL16}, s[{SWS}:{SWS+3}], s{sT0 + (j >> 2)} offen offset:{1024*(j&3)} sc1")
    a(f"s_add_u32 s{sT0}, s{sXB}, {128*1024+2048}\ns_add_u32 s{sT0}, s{sT0}, s{sM0W}")
    for b in range(4):
        for j in range(4):
            r = 64 + 16 * b + 4 * j
            a(f"buffer_load_dwordx4 v[{r}:{r+3}], v{vL16}, s[{SX}:{SX+3}], s{sT0} offen offset:{1024*j}")
        a(f"s_add_u32 s{sT0}, s{sT0}, 32768")
        if b == 0:
            a(f"""s_waitcnt vmcnt(4)
s_barrier
s_lshl_b32 s{sT2}, s{sXCD}, 2
s_and_b32 s{sT1}, s{sIDX}, 3
s_add_u32 s{sT2}, s{sT2}, s{sT1}
s_lshl_b32 s{sT2}, s{sT2}, 2
s_cmp_eq_u32 s{sW}, 0
s_cselect_b32 s{sT2}, s{sT2}, 0x1000
v_mov_b32 v{vINI}, 1
s_mov_b64 exec, 1
buffer_store_dword v{vINI}, v{vZERO}, s[{SDBG}:{SDBG+3}], s{sT2} offen sc1
s_mov_b64 exec, -1""")
    for q in range(4):
        for s in dma_d_setup(q): a(s)
        for s in dma_d(q): a(s)
    a.wait_all()
    for q in range(4):
        for it in dread(q): a(it[1])
    a.wait_all()
    for q in range(4, 7):
        for s in dma_d_setup(q): a(s)
        for s in dma_d(q): a(s)
    ini_load(); ini_check()
    a.wait_all()
    assert dbase[0] == saved[2]
    a.vm, a.lg = saved[0], saved[1]
    a.label("L_ph2")
    def set_vh(treg, dst):
        a(f"""s_lshl_b32 s{sT0}, s{treg}, 2
s_lshr_b32 s{sT0}, s{sBLK}, s{sT0}
s_and_b32 s{sT0}, s{sT0}, 15
s_mul_i32 s{sT0}, s{sT0}, {112*1024}
s_add_u32 s{sT0}, s{sT0}, s{sHB}
v_add_u32 v{dst}, s{sT0}, v{vHL}""")
    def hload(i, vaddr):
        r = vHF + 4 * i
        return f"buffer_load_dwordx4 v[{r}:{r+3}], v{vaddr}, s[{SWS}:{SWS+3}], s{sHQ+i} offen sc1"
    a(f"s_mov_b32 s{sCUR}, 0\ns_mov_b32 s{sSPIN}, 0")
    set_vh(sCUR, vHN)
    for i in range(HLAG):
        a.vmem(hload(i, vHN), f"H{i}")
        if i == 0: do_dread(4)
        if i == 1: do_dread(5)
        if i == HLAG - 1: do_dread(6)
    a.stamp("ph2 loop")
    a.label("L_loop")
    a(f"""v_mov_b32 v{vH}, v{vHN}
s_add_u32 s{sNXT}, s{sCUR}, 1
s_min_u32 s{sNXT}, s{sNXT}, 3""")
    set_vh(sNXT, vHN)
    a("s_waitcnt lgkmcnt(0)")
    for i in range(7):
        r = vHF + 4 * i
        a(f"s_waitcnt vmcnt({HLAG-1})")
        for s in range(4):
            acc = vACC + 4 * s; w = vWF + 16 * i + 4 * s
            c = "0" if i == 0 else f"v[{acc}:{acc+3}]"
            a(f"v_mfma_f32_16x16x32_bf16 v[{acc}:{acc+3}], v[{r}:{r+3}], v[{w}:{w+3}], {c}")
            if s == 0:
                a(f"v_max_u32 v{vMAX}, v{r}, v{r+1}" if i == 0 else f"v_max3_u32 v{vMAX}, v{vMAX}, v{r}, v{r+1}")
            if s == 1:
                a(f"v_max3_u32 v{vMAX}, v{vMAX}, v{r+2}, v{r+3}")
            if s == (3 if HLAG == 7 else 1):
                k = i + HLAG
                a(hload(k, vH) if k < 7 else hload(k - 7, vHN))
    a(f"""v_cmp_eq_u32 vcc, -1, v{vMAX}
s_and_b32 s{sT0}, s{sCUR}, 1
s_lshl_b32 s{sT0}, s{sT0}, 15
s_add_u32 s{sT0}, s{sT0}, s{sM0W}
s_add_u32 s{sT1}, s{sT0}, 4092
s_add_u32 s{sSPIN}, s{sSPIN}, 1
s_cbranch_vccnz L_bad
L_good:
s_cmp_ge_u32 s{sCUR}, 2
s_cbranch_scc1 L_dumphi
s_mov_b32 m0, s{sT0}
s_nop 0""")
    for i in range(16): a(f"ds_write_addtid_b32 v{vACC+i} offset:{256*i}")
    a(f"s_branch L_dumped\nL_dumphi:\ns_mov_b32 m0, s{sT1}\ns_nop 0")
    for i in range(16): a(f"ds_write_addtid_b32 v{vACC+i} offset:{65536-4092+256*i}")
    a(f"""L_dumped:
s_cmp_eq_u32 s{sCUR}, 3
s_mov_b32 s{sCUR}, s{sNXT}
s_cbranch_scc0 L_loop
s_branch L_fin
L_bad:
s_cmp_ge_u32 s{sSPIN}, {spin}
s_cbranch_scc1 L_good
s_cmp_eq_u32 s{sCUR}, 3
s_cbranch_scc1 L_loop
s_sleep 4
v_mov_b32 v{vHN}, v{vH}""")
    for i in range(HLAG): a(hload(i, vH))
    a("""s_branch L_loop
L_fin:""")
    a.stamp("loop done")
    a(f"""
v_lshrrev_b32 v32, 4, v{vLANE}
v_and_b32 v33, 15, v{vLANE}
v_lshlrev_b32 v34, 10, v32
v_lshl_add_u32 v34, v33, 4, v34
s_lshr_b32 s{sT0}, s{sW}, 1
s_lshl_b32 s{sT1}, s{sT0}, 15
s_and_b32 s{sT2}, s{sW}, 1
s_lshl_b32 s{sT2}, s{sT2}, 9
s_add_u32 s{sT1}, s{sT1}, s{sT2}
v_add_u32 v2, s{sT1}, v34
v_bfe_u32 v35, v{vLANE}, 2, 2
v_lshlrev_b32 v35, 12, v35
v_lshl_add_u32 v35, v32, 5, v35
v_and_b32 v36, 3, v{vLANE}
v_lshl_add_u32 v4, v36, 3, v35
s_lshl_b32 s{sT0}, s{sT0}, 2
s_lshr_b32 s{sT0}, s{sBLK}, s{sT0}
s_and_b32 s{sT0}, s{sT0}, 15
s_lshl_b32 s{sT0}, s{sT0}, 15
s_lshl_b32 s{sT1}, s{sXCD}, 18
s_add_u32 s{sT0}, s{sT0}, s{sT1}
s_and_b32 s{sT1}, s{sIDX}, 1
s_lshl_b32 s{sT1}, s{sT1}, 14
s_add_u32 s{sT0}, s{sT0}, s{sT1}
s_lshl_b32 s{sT2}, s{sT2}, 2
s_add_u32 s{sT0}, s{sT0}, s{sT2}
s_lshr_b32 s{sT1}, s{sIDX}, 2
s_lshl_b32 s{sT1}, s{sT1}, 7
s_add_u32 s{sT0}, s{sT0}, s{sT1}
s_waitcnt lgkmcnt(0)
s_barrier
""")
    a.stamp("fin bar")
    a.lg = []
    for u in range(2):
        for p in range(8):
            r = 128 + 32 * u + 4 * p
            a.lds(f"ds_read_b128 v[{r}:{r+3}], v2 offset:{4096*p+256*u}", f"q{u}_{p}")
    for u in range(2):
        b = 128 + 32 * u
        for p in range(1, 8):
            a.wait_lg(f"q{u}_{p}")
            for j in range(4): a(f"v_add_f32 v{b+j}, v{b+j}, v{b+4*p+j}")
        a(f"v_cvt_pk_bf16_f32 v{40+2*u}, v{b}, v{b+1}\nv_cvt_pk_bf16_f32 v{41+2*u}, v{b+2}, v{b+3}")
        a(f"buffer_store_dwordx2 v[{40+2*u}:{41+2*u}], v4, s[{SO}:{SO+3}], s{sT0} offen offset:{1024*u}")
    if stamps:
        a.stamp("stored")
        a("s_waitcnt vmcnt(0)")
        a.stamp("end")
        a("s_memrealtime s[16:17]\ns_waitcnt lgkmcnt(0)")
        for i in range(a.nst): a(f"v_writelane_b32 v{vST}, s{STREGS[i]}, {i}")
        a(f"v_writelane_b32 v{vST}, s{sSPIN}, 29\nv_writelane_b32 v{vST}, s18, 30\nv_writelane_b32 v{vST}, s16, 31")
        a(f"""s_lshl_b32 s{sT0}, s2, 10
s_lshl_b32 s{sT1}, s{sW}, 7
s_add_u32 s{sT0}, s{sT0}, s{sT1}
s_add_u32 s{sT0}, s{sT0}, {STAMP_OFF}
v_lshlrev_b32 v5, 2, v{vLANE}
s_mov_b64 exec, 0xffffffff
buffer_store_dword v{vST}, v5, s[{SWS}:{SWS+3}], s{sT0} offen""")
    a("L_end:\ns_endpgm")
    a.raw(".p2align 8\n.fill 4096, 4, 0xbf800000\n")
    a.raw(kernel_desc(NAME, 256))
    return a.text(), a.stnames
if __name__ == "__main__":
    t, _ = gen(); open("v3.s", "w").write(t)
    t, n = gen(stamps=True); open("v3_st.s", "w").write(t); open("v3_st.names", "w").write(",".join(n)); print(n)
```

```python
import v3
from asmlib import *
def mk(grid, block, lds, vgpr, first=True):
    t, _ = v3.gen()
    t = t.replace(v3.NAME, "main_kernel")
    l_main = "; @launch kernel=main_kernel grid=(256,1,1) block=(512,1,1) lds=163840\n"
    l_p = f"; @launch kernel=probe_kernel grid=({grid},1,1) block=({block},1,1) lds={lds}\n"
    t = t.replace("; @launch grid=(256,1,1) block=(512,1,1) lds=163840\n", (l_p + l_main) if first else (l_main + l_p))
    body = kernel_begin("probe_kernel") + """    s_memrealtime s[8:9]
    s_cmp_lg_u32 s2, 0
    s_cbranch_scc1 P_end
P_amp:
    s_memrealtime s[10:11]
    s_waitcnt lgkmcnt(0)
    s_sub_u32 s7, s10, s8
    s_cmp_lt_u32 s7, 6000
    s_cbranch_scc1 P_amp
P_end:
    s_endpgm
"""
    return t + body + kernel_desc("probe_kernel", vgpr)
open("dp_small.s", "w").write(mk(1, 64, 0, 8))
open("dp_big.s", "w").write(mk(256, 512, 163840, 256))
open("dp_mid.s", "w").write(mk(256, 256, 0, 64))
open("dp_lds.s", "w").write(mk(256, 64, 163840, 8))
```
